```python
import torch

def _softmax(x, axis=-1):
    return torch.softmax(x, dim=axis)
def _gelu(x):
    return torch.nn.functional.gelu(x, approximate="tanh")
def _silu(x):
    return torch.nn.functional.silu(x)
def _sigmoid(x):
    return torch.sigmoid(x)
def _layernorm(x, axis=-1, eps=1e-5):
    m = x.mean(dim=axis, keepdim=True)
    v = x.var(dim=axis, keepdim=True, unbiased=False)
    return (x - m) / torch.sqrt(v + eps)
def _scatter_add(tgt, idx, src, axis=0):
    return tgt.clone().index_add_(axis, idx, src)
def _segment_sum(src, seg, n):
    out = torch.zeros((n,) + src.shape[1:], dtype=src.dtype)
    return out.index_add_(0, seg, src)
def _pad(x, pw):
    flat = tuple(v for pair in reversed(pw) for v in pair)
    return torch.nn.functional.pad(x, flat)

kernel_name = 'gated_mix__ssm_conv_s4d__mixer_channel_mlp__prompt'

def setup_inputs():

    _w = (lambda a: (lambda t: t.to(torch.bfloat16) if t.is_floating_point() else t)(torch.as_tensor(a)))
    def _A_setup():
        Bsz, L, D, N = 1, 2048, 640, 128
        return {
            "u": _w((lambda *s: torch.randn(*s, dtype=torch.bfloat16) * 0.05)(Bsz, L, D)),
            "log_A_real": _w((lambda *s: torch.randn(*s, dtype=torch.bfloat16) * 3.2)(D, N) * 0.5),
            "A_imag": _w((lambda *s: torch.randn(*s, dtype=torch.bfloat16) * 0.1)(D, N) * 3.14),
            "C_real": _w((lambda *s: torch.randn(*s, dtype=torch.bfloat16) * 0.8)(D, N) / N ** 0.5),
            "C_imag": _w((lambda *s: torch.randn(*s, dtype=torch.bfloat16) * 0.8)(D, N) / N ** 0.5),
            "log_dt": _w((lambda *s: torch.randn(*s, dtype=torch.bfloat16) * 0.1)(D) * 0.5 - 4.0),
            "D_skip": _w((lambda *s: torch.randn(*s, dtype=torch.bfloat16) * 0.1)(D)),
        }
    _A_in = _A_setup()

    def _B_setup():
        B, S, D, F = 1, 2048, 640, 1728
        return {
            "x": _w((lambda *s: torch.randn(*s, dtype=torch.bfloat16) * 0.05)(B, S, D)),
            "w1": _w((lambda *s: torch.randn(*s, dtype=torch.bfloat16) * 0.8)(D, F) * (D ** -0.5)),
            "b1": _w((lambda *s: torch.randn(*s, dtype=torch.bfloat16) * 0.4)(F)),
            "w2": _w((lambda *s: torch.randn(*s, dtype=torch.bfloat16) * 0.05)(F, D) * (F ** -0.5)),
            "b2": _w((lambda *s: torch.randn(*s, dtype=torch.bfloat16) * 0.05)(D)),
        }
    _B_in = _B_setup()

    return {
        "A_u": _A_in["u"],
        "A_log_A_real": _A_in["log_A_real"],
        "A_A_imag": _A_in["A_imag"],
        "A_C_real": _A_in["C_real"],
        "A_C_imag": _A_in["C_imag"],
        "A_log_dt": _A_in["log_dt"],
        "A_D_skip": _A_in["D_skip"],
        "B_x": _B_in["x"],
        "B_w1": _B_in["w1"],
        "B_b1": _B_in["b1"],
        "B_w2": _B_in["w2"],
        "B_b2": _B_in["b2"],
        "gate_w": _w((lambda *s: torch.randn(*s, dtype=torch.bfloat16) * 0.05)(640) * 16.0),
    }

def reference(A_u, A_log_A_real, A_A_imag, A_C_real, A_C_imag, A_log_dt, A_D_skip, B_x, B_w1, B_b1, B_w2, B_b2, gate_w):
    def _A_ref(u, log_A_real, A_imag, C_real, C_imag, log_dt, D_skip):
        L = u.shape[1]
        dt = torch.exp(log_dt)
        A = -torch.exp(log_A_real) + 1j * A_imag
        C = (C_real + 1j * C_imag) * dt[:, None]
        pos = (lambda x, dt: x.to(dt))(torch.arange(L), log_dt.dtype)
        P = torch.exp((A * dt[:, None])[:, :, None] * pos[None, None, :])
        K = 2.0 * torch.einsum("dn,dnl->dl", C, P).real
        L2 = 2 * L
        u_t = (lambda x, *d: x.permute(*d))(u, 0, 2, 1)
        Kf = (lambda x, *a, **k: torch.fft.rfft(x.float(), *a, **k))(K, L2)
        Uf = (lambda x, *a, **k: torch.fft.rfft(x.float(), *a, **k))(u_t, L2)
        y = (lambda x, *a, **k: torch.fft.irfft(x, *a, **k).to(torch.bfloat16))(Uf * Kf[None, :, :], L2)[:, :, :L]
        y = (lambda x, *d: x.permute(*d))(y, 0, 2, 1)
        return y + u * D_skip[None, None, :]

    def _B_ref(x, w1, b1, w2, b2):
        y = _layernorm(x, axis=-1)
        h = _gelu(torch.einsum("bsd,df->bsf", y, w1) + b1)
        return torch.einsum("bsf,fd->bsd", h, w2) + b2

    x = A_u
    g = _sigmoid((x * gate_w).sum(-1, keepdims=True))
    a = _A_ref(x, A_log_A_real, A_A_imag, A_C_real, A_C_imag, A_log_dt, A_D_skip)
    b = _B_ref(x, B_w1, B_b1, B_w2, B_b2)
    return g * a + (1 - g) * b
```

```python
class K:
    def __init__(self, name, vgpr=256, sgpr=102, accum=None):
        self.name = name; self.lines = []; self.vgpr = vgpr; self.sgpr = sgpr; self.accum = accum
        self._lbl = 0
    def __call__(self, s):
        for l in s.strip("\n").split("\n"):
            self.lines.append("    " + l.strip() if not l.strip().endswith(":") else l.strip())
    def label(self, base="L"):
        self._lbl += 1
        return f"{self.name}_{base}{self._lbl}"
    def text(self):
        o = [f".globl {self.name}", ".p2align 8", f".type {self.name},@function", f"{self.name}:"]
        return "\n".join(o + self.lines) + "\n"
    def desc(self):
        acc = self.accum if self.accum is not None else min(256, (self.vgpr + 3) // 4 * 4)
        return f""".p2align 6
.amdhsa_kernel {self.name}
  .amdhsa_next_free_vgpr {self.vgpr}
  .amdhsa_next_free_sgpr {self.sgpr}
  .amdhsa_accum_offset {acc}
  .amdhsa_group_segment_fixed_size 0
  .amdhsa_kernarg_size 128
  .amdhsa_user_sgpr_count 2
  .amdhsa_user_sgpr_kernarg_segment_ptr 1
  .amdhsa_system_sgpr_workgroup_id_x 1
  .amdhsa_float_denorm_mode_32 3
.end_amdhsa_kernel
"""
def build(header_lines, kernels):
    s = "\n".join(header_lines) + "\n"
    s += '.amdgcn_target "amdgcn-amd-amdhsa--gfx950"\n.text\n'
    for k in kernels: s += k.text()
    s += '.section .rodata,"a"\n'
    for k in kernels: s += k.desc()
    return s
```

```python
from asmlib import K
import struct
def R(a, n=1, t="v"): return f"{t}{a}" if n == 1 else f"{t}[{a}:{a+n-1}]"
def F(x): return hex(struct.unpack("<I", struct.pack("<f", x))[0])
CNT = 0; ST = 0x10000; UT = 0x100000; AT = 0x400000; W2P = 0x700000; H = 0xA00000; WSN = 0x1100000
OOB = 0x40000000
SU, SW1, SWS, SW2, SOUT = "s[36:39]", "s[40:43]", "s[44:47]", "s[48:51]", "s[52:55]"
sW, sX, sI, sRB, sCT, sPAIR, sTK, sCHT = "s3", "s56", "s57", "s58", "s59", "s60", "s61", "s62"
sONE = "s63"
sKD = "s64"
sCNT = "s65"
SC = "sc1"
L_SU, L_SW = 98304, 98304 + 12288
L_TAB = 98304; TROW = 528; TCH = 62 * TROW
L_KD = 131072; KCOPY = 4160; KCH = 2 * KCOPY; KPAIR = 2 * KCH
X = {}
class G(K):
    def __init__(s, *a, **kw):
        super().__init__(*a, **kw); s.vm = []
    def m(s, txt, tag=None):
        s(txt); s.vm.append(tag)
    def wait(s, tag, extra=""):
        if tag not in s.vm: return
        idx = max(i for i, t in enumerate(s.vm) if t == tag)
        n = len(s.vm) - 1 - idx
        assert n <= 63, n
        s(f"s_waitcnt vmcnt({n}) {extra}".strip())
    def wait0(s): s("s_waitcnt vmcnt(0)"); s.vm = []

def prologue(k, prefetch=True):
    k(f"""s_cmp_ge_u32 s2, 256
    s_cbranch_scc1 {k.name}_end
    s_load_dwordx16 s[4:19], s[0:1], 0
    s_load_dwordx16 s[20:35], s[0:1], 64""")
    if prefetch:
        k(f"""s_getpc_b64 s[66:67]
        {k.name}_pc:
        v_lshlrev_b32 v1, 7, v0
        v_min_u32 v1, {k.name}_end-{k.name}_pc, v1""")
        k.m("global_load_dword v255, v1, s[66:67]", "pf")
    k(f"""v_lshrrev_b32 v1, 6, v0
    v_and_b32 v0, 63, v0
    v_readfirstlane_b32 {sW}, v1
    s_and_b32 {sX}, s2, 7
    s_lshr_b32 {sI}, s2, 3
    s_mul_i32 s66, {sI}, 37
    s_lshr_b32 s66, s66, 8
    s_mul_i32 s67, s66, 7
    s_sub_u32 s67, {sI}, s67
    s_lshr_b32 {sRB}, {sX}, 1
    s_lshl2_add_u32 {sRB}, {sRB}, s66
    s_and_b32 {sCT}, {sX}, 1
    s_mul_i32 {sCT}, {sCT}, 7
    s_add_u32 {sCT}, {sCT}, s67
    s_mul_i32 s66, {sI}, 3
    s_sub_u32 s66, s66, 56
    s_max_i32 s66, s66, {sI}
    s_mul_i32 {sPAIR}, {sX}, 40
    s_add_u32 {sPAIR}, {sPAIR}, s66
    s_lshr_b32 {sTK}, {sI}, 3
    s_lshl2_add_u32 {sTK}, {sX}, {sTK}
    s_and_b32 {sCHT}, {sI}, 7
    s_mov_b32 {sONE}, 0x3f803f80
    s_mov_b32 s38, 2621440
    s_mov_b32 s39, 0x20000
    s_mov_b32 s42, 2211840
    s_mov_b32 s43, 0x20000
    s_mov_b32 s46, {WSN}
    s_mov_b32 s47, 0x20000
    s_mov_b32 s50, 2211840
    s_mov_b32 s51, 0x20000
    s_mov_b32 s54, 2621440
    s_mov_b32 s55, 0x20000""")
def srds(k):
    k("""s_waitcnt lgkmcnt(0)
    s_mov_b64 s[36:37], s[4:5]
    s_mov_b64 s[40:41], s[20:21]
    s_mov_b64 s[44:45], s[34:35]
    s_mov_b64 s[48:49], s[24:25]
    s_mov_b64 s[52:53], s[30:31]""")

def side_addr(k):
    k(f"s_lshl_b32 s66, {sW}, 6\nv_add_u32 v1, s66, v0")
    for j in range(3):
        k(f"""v_mul_u32_u24 v12, 6554, v1
        v_mul_u32_u24 v13, 3277, v1
        v_lshrrev_b32 v12, 16, v12
        v_lshrrev_b32 v13, 16, v13
        v_mul_u32_u24 v12, 1120, v12
        v_mul_u32_u24 v13, 960, v13
        v_lshl_add_u32 v{2+j}, v1, 4, v12
        v_lshl_add_u32 v{5+j}, v1, 4, v13""")
        if j < 2: k("v_add_u32 v1, 256, v1")
    k(f"""v_and_b32 v1, 31, v0
    v_lshlrev_b32 v10, 4, v1
    v_lshlrev_b32 v11, 3, v1
    v_lshrrev_b32 v12, 5, v0
    v_mul_u32_u24 v12, 1280, v12
    v_add_u32 v8, v12, v10
    v_add_u32 v9, v12, v11
    s_mul_i32 s68, {sTK}, 81920
    s_mul_i32 s66, {sCHT}, 160
    s_add_u32 s68, s68, s66
    s_lshr_b32 s66, s2, 2
    s_mul_i32 s70, s66, 40960
    s_and_b32 s66, s2, 3
    s_mul_i32 s66, s66, 320
    s_add_u32 s70, s70, s66
    s_cmp_ge_u32 {sW}, 2
    s_cselect_b32 s69, {OOB}, s68
    s_cselect_b32 s71, {OOB}, s70
    s_lshl2_add_u32 s72, s2, {sW}
    s_mul_i32 s72, s72, 2560
    s_lshl_b32 s73, {sW}, 10""")
def side_load(k):
    for j in range(3):
        k(f"s_add_u32 m0, s73, {L_SU + 4096*j}")
        k.m(f"buffer_load_dwordx4 v{2+j}, {SU}, {'s69' if j == 2 else 's68'} offen lds", "side")
    for j in range(3):
        k(f"s_add_u32 m0, s73, {L_SW + 4096*j}")
        k.m(f"buffer_load_dwordx4 v{5+j}, {SW2}, {'s71' if j == 2 else 's70'} offen lds", "side")
    k.m(f"buffer_load_dwordx4 v[16:19], v8, {SU}, s72 offen", "side")
    k.m(f"buffer_load_dwordx4 v[20:23], v8, {SU}, s72 offen offset:512", "side")
    k.m(f"buffer_load_dwordx2 v[24:25], v9, {SU}, s72 offen offset:1024", "side")
    k.m(f"global_load_dwordx4 v[28:31], v10, s[28:29]", "side")
    k.m(f"global_load_dwordx4 v[32:35], v10, s[28:29] offset:512", "side")
    k.m(f"global_load_dwordx2 v[36:37], v11, s[28:29] offset:1024", "side")
def side_addr2(k):
    k(f"""v_lshrrev_b32 v8, 4, v0
    v_bfe_u32 v9, v0, 2, 2
    v_and_b32 v10, 3, v0
    v_lshl_add_u32 v11, v8, 3, v9
    v_mul_u32_u24 v11, 160, v11
    v_lshl_add_u32 v11, v10, 3, v11
    s_and_b32 s66, {sW}, 1
    s_mul_i32 s67, s66, 5120
    s_lshr_b32 s74, {sW}, 1
    s_lshl_b32 s75, s74, 5
    s_add_u32 s67, s67, s75
    s_add_u32 s67, s67, {L_SU}
    v_add_u32 v2, s67, v11
    v_lshrrev_b32 v11, 5, v0
    v_lshl_add_u32 v11, v11, 4, v9
    v_and_b32 v12, 16, v0
    v_lshrrev_b32 v12, 2, v12
    v_add_u32 v11, v11, v12
    v_mul_u32_u24 v11, 320, v11
    s_lshl_b32 s67, s74, 6
    s_lshl3_add_u32 s67, s66, s67
    s_add_u32 s67, s67, {L_SW}
    v_lshl_add_u32 v3, v10, 4, v11
    v_add_u32 v3, s67, v3
    s_mul_i32 s67, s66, 160
    s_add_u32 s67, s67, {L_SW + 128}
    v_lshl_add_u32 v4, v10, 3, v11
    v_add_u32 v4, s67, v4
    v_bfe_u32 v9, v0, 1, 3
    v_lshlrev_b32 v9, 13, v9
    v_lshl_add_u32 v9, v8, 4, v9
    v_and_b32 v10, 1, v0
    v_lshl_add_u32 v5, v10, 6, v9
    v_lshlrev_b32 v6, 4, v0
    v_and_b32 v7, 32, v0
    s_mul_i32 s68, {sCHT}, 5
    s_add_u32 s68, s68, s74
    s_lshl_b32 s68, s68, 16
    s_lshl1_add_u32 s67, {sTK}, s66
    s_lshl_b32 s67, s67, 7
    s_add_u32 s68, s68, s67
    s_add_u32 s68, s68, {UT}
    s_add_u32 s69, s68, 131072
    s_add_u32 s70, s68, 262144
    s_and_b32 s67, s2, 3
    s_mul_i32 s67, s67, 108
    s_lshr_b32 s71, s2, 2
    s_add_u32 s67, s67, s71
    s_mul_i32 s67, s67, 5120
    s_add_u32 s67, s67, {W2P}
    s_cmp_ge_u32 s2, 216
    s_cselect_b32 s67, {OOB}, s67
    s_add_u32 s71, s67, s73
    s_add_u32 s72, s71, {54*5120}
    s_mul_i32 s75, s66, {54*5120}
    s_add_u32 s75, s75, s67
    s_add_u32 s75, s75, 4096
    s_cmp_ge_u32 {sW}, 2
    s_cselect_b32 s70, {OOB}, s70
    s_cselect_b32 s75, {OOB}, s75
    s_lshl2_add_u32 s76, s2, {sW}
    s_lshl_b32 s76, s76, 6
    s_add_u32 s76, s76, {ST}""")
def side_do(k):
    k("s_barrier")
    for j in range(3):
        for e in range(2): k(f"ds_read_b64_tr_b16 {R(40+4*j+2*e,2)}, v2 offset:{64*j + 640*e}")
    for j in range(3):
        for e in range(2): k(f"ds_read_b64_tr_b16 {R(52+4*j+2*e,2)}, {'v4' if j == 2 else 'v3'} offset:{(160 if j == 1 else 0) + 2560*e}")
    for i in range(10):
        c = ("0", "0", "0") if i == 0 else ("v12", "v13", "v14")
        k(f"""v_dot2_f32_bf16 v12, v{16+i}, {sONE}, {c[0]}
        v_dot2_f32_bf16 v13, v{16+i}, v{16+i}, {c[1]}
        v_dot2_f32_bf16 v14, v{16+i}, v{28+i}, {c[2]}""")
        if i == 4:
            k("s_waitcnt lgkmcnt(0)")
            for j, so in enumerate(("s68", "s69", "s70")): k.m(f"buffer_store_dwordx4 {R(40+4*j,4)}, v5, {SWS}, {so} offen {SC}", "sst")
            for j, so in enumerate(("s71", "s72", "s75")): k.m(f"buffer_store_dwordx4 {R(52+4*j,4)}, v6, {SWS}, {so} offen {SC}", "sst")
    k("s_barrier")
    for sh in (8, 4, 2, 1):
        for r in (12, 13, 14): k(f"v_add_f32 v{r}, v{r}, v{r} row_ror:{sh}")
    for r in (12, 13, 14): k(f"v_add_f32 v{r}, v{r}, v{r} row_bcast:15 row_mask:0xa")
    c0 = -2 * 0.7978845608028654 * 1.4426950408889634
    k(f"""v_mul_f32 v12, {F(-1/640)}, v12
    v_mul_f32 v13, {F(1/640)}, v13
    v_mul_f32 v14, {F(-1.4426950408889634)}, v14
    v_fma_f32 v13, -v12, v12, v13
    v_exp_f32 v14, v14
    v_max_f32 v13, 0, v13
    v_add_f32 v13, {F(1e-5)}, v13
    v_cvt_pk_bf16_f32 v16, v12, v12
    v_rsq_f32 v15, v13
    v_sqrt_f32 v22, v13
    v_add_f32 v14, 1.0, v14
    v_and_b32 v17, 0xffff0000, v16
    v_rcp_f32 v23, v14
    v_sub_f32 v17, v12, v17
    v_cvt_pk_bf16_f32 v18, v22, v22
    v_cvt_pk_bf16_f32 v17, v17, v17
    v_and_b32 v18, 0xffff0000, v18
    v_sub_f32 v19, v22, v18
    v_cvt_pk_bf16_f32 v18, v18, v19
    v_mov_b32 v19, 0
    v_mul_f32 v20, {F(c0)}, v15
    v_mul_f32 v21, v15, v15
    v_mul_f32 v21, {F(0.044715)}, v21
    v_mul_f32 v21, v20, v21
    s_mov_b32 exec_lo, 0x10000
    s_mov_b32 exec_hi, 0x10000""")
    k.m(f"buffer_store_dwordx4 v[16:19], v7, {SWS}, s76 offen {SC}", "sst")
    k.m(f"buffer_store_dwordx4 v[20:23], v7, {SWS}, s76 offen offset:16 {SC}", "sst")
    k("s_mov_b64 exec, -1")

KP = 64
def kgen_addr(k):
    k(f"""s_lshl2_add_u32 s66, {sPAIR}, {sW}
    s_lshl_b32 s67, s66, 7
    v_lshl_add_u32 v14, v0, 1, s67
    s_and_b32 s66, s66, -2
    v_mov_b32 v15, s66""")
def kgen_load(k, j):
    for i, p in enumerate((6, 8, 10, 12)):
        k.m(f"global_load_ushort v{KP+6*j+i}, v14, s[{p}:{p+1}] offset:{512*j}", "side")
    for i, p in enumerate((14, 16)):
        k.m(f"global_load_ushort v{KP+6*j+4+i}, v15, s[{p}:{p+1}] offset:{4*j}", "side")
def cmul(k, d, x, e, t):
    k(f"""v_pk_mul_f32 {R(t,2)}, {R(x,2)}, {R(e,2)} op_sel:[0,0] op_sel_hi:[1,0]
    v_pk_fma_f32 {R(d,2)}, {R(x,2)}, {R(e,2)}, {R(t,2)} op_sel:[1,1,0] op_sel_hi:[0,1,1] neg_lo:[1,0,0]""")
def kgen(k, after_b1=None, before_b2=None, after_b2=None):
    L2E = 1.4426950408889634
    hi = struct.unpack("<f", struct.pack("<f", L2E))[0]; lo = L2E - hi
    lar, aim, cr, ci, ldt, dsk = range(KP, KP + 6)
    for r in range(KP, KP + 6): k(f"v_lshlrev_b32 v{r}, 16, v{r}")
    k(f"s_mov_b32 s66, {F(hi)}")
    for r, t in ((lar, 2), (ldt, 4)):
        k(f"""v_mul_f32 v{t}, s66, v{r}
        v_fma_f32 v{t+1}, v{r}, s66, -v{t}
        v_exp_f32 v{t}, v{t}
        v_fmac_f32 v{t+1}, {F(lo)}, v{r}
        v_mul_f32 v{t+1}, {F(0.6931471805599453)}, v{t+1}
        v_fmac_f32 v{t}, v{t}, v{t+1}
        v_cvt_pk_bf16_f32 v{t}, v{t}, v{t}
        v_and_b32 v{r}, 0xffff0000, v{t}""")
    E1, E8, E256, T, A0 = 8, 10, 12, 6, 16
    k(f"""v_mul_f32 v2, v{lar}, v{ldt}
    v_mul_f32 v3, v{aim}, v{ldt}
    v_mul_f32 v2, {F(-L2E)}, v2
    v_mul_f32 v3, 0.15915494, v3
    v_add_f32 v{ldt}, v{ldt}, v{ldt}
    v_mul_f32 v{A0}, v{cr}, v{ldt}
    v_mul_f32 v{A0+1}, v{ci}, v{ldt}""")
    for e, p in ((E1, 1.0), (E8, 8.0), (E256, 256.0)):
        k(f"""v_mul_f32 v5, {F(p)}, v3
        v_mul_f32 v4, {F(p)}, v2
        v_fract_f32 v5, v5
        v_exp_f32 v4, v4
        v_cos_f32 v{e}, v5
        v_sin_f32 v{e+1}, v5
        s_nop 0
        v_pk_mul_f32 {R(e,2)}, {R(e,2)}, v[4:5] op_sel_hi:[1,0]""")
    k(f"""s_lshr_b32 s66, {sW}, 1
    s_mul_i32 s66, s66, {TCH}
    s_add_u32 s66, s66, {L_TAB}
    s_and_b32 s67, {sW}, 1
    s_lshl_b32 s67, s67, 8
    s_add_u32 s67, s67, s66
    v_lshl_add_u32 v2, v0, 2, s67
    v_mov_b32 v5, 0x3f80
    ds_write_b32 v2, v5 offset:{30*TROW}""")
    def row(hh, s):
        rho = 8 * (s >> 2) + 4 * hh + (s & 3)
        return rho - (rho > 27)
    tmp = [40]
    def put(x, rows, neg):
        t = tmp[0]; tmp[0] = 40 + (t - 39) % 8
        k(f"v_cvt_pk_bf16_f32 v{t}, v{x}, {'-' if neg else ''}v{x+1}")
        for r in rows: k(f"ds_write_b32 v2, v{t} offset:{r*TROW}")
    for j in range(9):
        if j: cmul(k, A0 + 2*j, A0 + 2*j - 2, E1, T)
        put(A0 + 2*j, [row(hh, j - 4*hh) for hh in (0, 1) if 0 <= j - 4*hh <= 4], 1)
    for j in range(5):
        cmul(k, A0 + 4*j, A0 + 4*j, E256, T)
        put(A0 + 4*j, [row(hh, 5 + j - 2*hh) for hh in (0, 1) if 0 <= j - 2*hh <= 2], 1)
    for hh in (0, 1):
        for j in range(3):
            cmul(k, A0 + 8*j, A0 + 8*j, E256, T); put(A0 + 8*j, [row(hh, 8 + j)], 1)
    for q in range(4):
        for j in range(2):
            cmul(k, A0 + 16*j, A0 + 16*j, E256, T); put(A0 + 16*j, [row(q & 1, 11 + 2*(q >> 1) + j)], 1)
    for b in range(1, 32):
        if b > 1: cmul(k, 14, E8 if b == 2 else 14, E8, T)
        put(E8 if b == 1 else 14, [30 + b], 0)
    k(f"""v_and_b32 v5, 31, v0
    v_lshrrev_b32 v6, 5, v0
    v_mul_u32_u24 v4, {TROW}, v5
    v_lshl_add_u32 v4, v6, 4, v4
    v_add_u32 v4, s66, v4
    v_cmp_lt_u32 vcc, 27, v5
    v_subrev_u32 v3, {TROW}, v4
    v_cndmask_b32 v3, v4, v3, vcc
    s_waitcnt lgkmcnt(0)
    s_barrier""")
    if after_b1: after_b1()
    FA = 96
    for j in range(16):
        k(f"ds_read_b128 {R(FA+8*j,4)}, v3 offset:{32*j}\nds_read_b128 {R(FA+8*j+4,4)}, v4 offset:{30*TROW+32*j}")
        if j >= 4:
            k(f"s_waitcnt lgkmcnt(8)")
            jj = j - 4
            k(f"v_mfma_f32_32x32x16_bf16 v[16:31], {R(FA+8*jj,4)}, {R(FA+8*jj+4,4)}, {'0' if jj == 0 else 'v[16:31]'}")
    k(f"""s_mul_i32 s66, {sW}, {KCOPY}
    s_add_u32 s66, s66, {sKD}
    v_lshlrev_b32 v5, 4, v5
    v_sub_u32 v5, s66, v5
    v_lshlrev_b32 v7, 3, v6
    v_sub_u32 v2, v5, v7
    v_lshlrev_b32 v7, 9, v6
    v_sub_u32 v3, v5, v7
    v_and_b32 v4, 7, v0
    v_lshl_add_u32 v4, v4, 2, s66
    v_cmp_eq_u32 vcc, 0, v0
    v_and_b32 v7, 1, v0
    v_cndmask_b32 v{dsk}, 0, v{dsk}, vcc
    v_cmp_eq_u32 s[68:69], 1, v7
    v_add_u32 v2, {4088-512}, v2
    v_add_u32 v3, {4080-3072}, v3""")
    for jj in range(12, 16):
        k(f"s_waitcnt lgkmcnt({2*(15-jj)})")
        k(f"v_mfma_f32_32x32x16_bf16 v[16:31], {R(FA+8*jj,4)}, {R(FA+8*jj+4,4)}, v[16:31]")
    if before_b2: before_b2()
    k("s_barrier")
    if after_b2: after_b2()
    a = list(range(16, 21)); b = [21, 22, 23]; c = [24, 25, 26]; d = [[27, 28, 32], [29, 30, 33]]
    k(f"""s_bitcmp1_b32 {sW}, 0
    s_nop 7
    v_add_f32 v16, v16, v{dsk}
    v_cndmask_b32 v32, v27, v28, s[68:69]
    v_cndmask_b32 v33, v29, v30, s[68:69]
    v_mov_b32 v34, 0""")
    le, lj = k.label("ke"), k.label("kj")
    k(f"s_cbranch_scc1 {le}")
    def pk(dst, prs):
        for i, (x, y) in enumerate(prs): k(f"v_cvt_pk_bf16_f32 v{dst+i}, v{x}, v{y}")
    pk(36, [(a[3], a[2]), (a[1], a[0]), (b[2], b[1]), (b[0], b[0])])
    pk(40, [(c[2], c[2]), (c[1], c[1]), (c[1], c[0]), (c[0], c[0])])
    for i, (d0, d1, x) in enumerate(d): pk(44 + 4*i, [(d1, d1), (d1, x), (d0, d0), (d0, d0)])
    k(f"s_branch {lj}\n{le}:")
    pk(36, [(a[4], a[3]), (a[2], a[1]), (b[2], b[2]), (b[1], b[0])])
    pk(40, [(c[2], c[2]), (c[2], c[1]), (c[1], c[1]), (c[0], c[0])])
    for i, (d0, d1, x) in enumerate(d): pk(44 + 4*i, [(d1, d1), (d1, d1), (x, d0), (d0, d0)])
    k(f"""v_cvt_pk_bf16_f32 v34, v16, v34
    v_cndmask_b32 v34, 0, v34, vcc
    {lj}:
    ds_write_b64 v2, v[36:37] offset:512
    ds_write_b64 v2, v[38:39]
    ds_write_b128 v3, v[40:43] offset:2048
    ds_write_b128 v3, v[44:47] offset:1024
    ds_write_b128 v3, v[48:51]
    s_mov_b64 exec, 0xff
    ds_write_b32 v4, v34 offset:4096
    s_mov_b64 exec, -1""")
```

```python
from g0 import *
vXO, vWO = 88, 89
sXS, sWS_, sKK, sM0 = "s77", "s78", "s79", "s80"
def g1_addr(k, rot):
    k(f"""v_lshrrev_b32 v90, 3, v0
    v_lshrrev_b32 v91, 4, v0
    s_lshl_b32 s66, {sW}, 2
    v_xor_b32 v92, v0, v91
    v_xor_b32 v92, s66, v92
    v_and_b32 v92, 7, v92
    v_mul_u32_u24 v90, 1280, v90
    v_lshl_add_u32 v{vXO}, v92, 4, v90
    v_lshlrev_b32 v92, 2, v91
    v_xor_b32 v92, v0, v92
    v_and_b32 v92, 15, v92
    v_mul_u32_u24 v91, 3456, v91
    v_lshl_add_u32 v{vWO}, v92, 4, v91
    s_cmp_eq_u32 {sCT}, 13
    s_cselect_b32 s66, 7, 15
    v_cmp_lt_u32 vcc, s66, v92
    v_mov_b32 v90, {OOB}
    s_mul_i32 {sXS}, {sRB}, 163840
    s_mul_i32 s66, {sW}, 10240
    s_add_u32 {sXS}, {sXS}, s66
    s_lshl_b32 {sWS_}, {sCT}, 8
    s_mul_i32 s66, {sW}, 13824
    s_add_u32 {sWS_}, {sWS_}, s66
    s_lshl_b32 {sM0}, {sW}, 10
    v_cndmask_b32 v{vWO}, v{vWO}, v90, vcc""")
    if rot:
        k(f"""s_mul_i32 s66, {sRB}, 3
        s_mul_i32 s67, {sCT}, {rot}
        s_add_u32 s66, s66, s67
        s_mul_i32 s67, s66, 6554
        s_lshr_b32 s67, s67, 16
        s_mul_i32 s67, s67, 10
        s_sub_u32 {sKK}, s66, s67""")
    else: k(f"s_mov_b32 {sKK}, 0")
def g1_dma(k, st):
    buf = (st % 4) * 32768; out = []
    def mk(i):
        def f():
            x = i < 4; j = i & 3
            if i == 0: k(f"s_lshl_b32 s81, {sKK}, 7\ns_add_u32 s81, s81, {sXS}")
            elif i == 4: k(f"s_mul_i32 s81, {sKK}, 221184\ns_add_u32 s81, s81, {sWS_}\ns_add_u32 {sKK}, {sKK}, 1\ns_cmp_eq_u32 {sKK}, 10\ns_cselect_b32 {sKK}, 0, {sKK}")
            k(f"s_add_u32 m0, {sM0}, {buf + (0 if x else 16384) + 4096*j}")
            if j: k(f"s_add_u32 s81, s81, {40960 if x else 55296}")
            k.m(f"buffer_load_dwordx4 v{vXO if x else vWO}, {SU if x else SW1}, s81 offen lds", f"g{st}")
        return f
    return [mk(i) for i in range(8)]
ACC = 96; FR = 16
def gemm1(k, poll=None, fill=None):
    XA, WA = 2, 10
    k(f"""v_and_b32 v48, 31, v0
    v_lshrrev_b32 v49, 5, v0
    v_bfe_u32 v50, v0, 1, 3
    v_xor_b32 v50, v50, v49
    s_and_b32 s66, {sW}, 1
    s_lshl_b32 s66, s66, 13
    v_lshl_add_u32 v51, v48, 7, s66""")
    for ks in range(4):
        k(f"v_xor_b32 v52, {2*ks}, v50\nv_lshl_add_u32 v{XA+ks}, v52, 4, v51\nv_add_u32 v{XA+4+ks}, 0x10000, v{XA+ks}")
    k(f"""v_bfe_u32 v50, v0, 2, 2
    v_lshl_add_u32 v51, v49, 3, v50
    v_lshlrev_b32 v51, 8, v51
    s_and_b32 s66, {sW}, 2
    v_xor_b32 v50, s66, v50
    v_lshl_add_u32 v51, v50, 6, v51
    v_and_b32 v50, 16, v0
    v_lshl_add_u32 v51, v50, 1, v51
    v_and_b32 v50, 3, v0
    v_lshl_add_u32 v51, v50, 3, v51
    v_add_u32 v{WA}, 16384, v51
    v_xor_b32 v{WA+1}, 64, v{WA}
    v_add_u32 v{WA+2}, 0x10000, v{WA}
    v_add_u32 v{WA+3}, 0x10000, v{WA+1}
    v_mov_b32 v14, 0
    v_mov_b32 v15, 0""")
    k(f"""s_lshr_b32 s66, {sW}, 1
    s_lshl1_add_u32 s66, {sCT}, s66
    s_lshl_b32 s67, s66, 7
    v_lshl_add_u32 v50, v48, 1, s67
    v_min_u32 v50, {3456-66}, v50
    s_and_b32 s68, {sW}, 1
    s_lshl1_add_u32 s68, {sRB}, s68
    s_lshl_b32 s82, s68, 11
    s_add_u32 s82, s82, {ST}
    v_lshlrev_b32 v58, 5, v48
    s_mul_i32 s83, s68, {4*55296}
    s_lshl_b32 s67, s66, 11
    s_add_u32 s83, s83, s67
    s_add_u32 s83, s83, {H}
    s_cmp_eq_u32 s66, 27
    s_cselect_b32 s83, {OOB}, s83
    s_add_u32 s84, s83, {2*55296}
    v_bfe_u32 v51, v0, 4, 1
    v_mul_u32_u24 v51, 55296, v51
    v_lshl_add_u32 v51, v49, 8, v51
    v_and_b32 v52, 15, v0
    v_lshl_add_u32 v59, v52, 4, v51""")
    k.m("global_load_ushort v56, v50, s[22:23]", "b1")
    k.m("global_load_ushort v57, v50, s[22:23] offset:64", "b1")
    def reads(g):
        st, ks = divmod(g, 4); up = (st % 4) >> 1; o = (st & 1) * 32768; f = FR + 16 * (g & 1)
        r = []
        for ti in range(2):
            for e in range(2): r.append(f"ds_read_b64_tr_b16 {R(f+4*ti+2*e,2)}, v{WA+2*up+ti} offset:{o + (16*ks+4*e)*256}")
        for tj in range(2): r.insert(2 + 3*tj, f"ds_read_b128 {R(f+8+4*tj,4)}, v{XA+4*up+ks} offset:{o + 4096*tj}")
        return r
    k.wait("g0"); k("s_barrier")
    for r in reads(0): k(r)
    dq = []
    for g in range(40):
        st, ks = divmod(g, 4); f = FR + 16 * (g & 1)
        def mf(ti, tj):
            a = ACC + 16 * (2*ti + tj)
            k(f"v_mfma_f32_32x32x16_bf16 {R(a,16)}, {R(f+4*ti,4)}, {R(f+8+4*tj,4)}, {'0' if g == 0 else R(a,16)}")
        rd = reads(g + 1) if g < 39 else []
        k("s_waitcnt lgkmcnt(0)")
        mf(0, 0)
        if ks == 3 and st < 9:
            k.wait(f"g{st+1}")
            if poll and st == 8: poll(1)
            k("s_barrier")
            if st + 4 < 10: dq += g1_dma(k, st + 4)
            if st == 8:
                for tj in range(2):
                    for h in range(2): k.m(f"buffer_load_dwordx4 {R(64+8*tj+4*h,4)}, v58, {SWS}, s82 offen offset:{1024*tj+16*h} {SC}", "st")
        if poll and g == 28: poll(0)
        for r in rd[:3]: k(r)
        mf(1, 0)
        for r in rd[3:]: k(r)
        if dq: dq.pop(0)()
        mf(0, 1)
        for i in range(4): k(f"v_dot2c_f32_bf16 v14, {sONE}, v{f+i}")
        if dq: dq.pop(0)()
        mf(1, 1)
        for i in range(4): k(f"v_dot2c_f32_bf16 v15, {sONE}, v{f+4+i}")
    k(f"v_cmp_gt_u32 vcc, 32, v0")
    k.wait("st")
    for ti in range(2):
        a = 16 + 4*ti
        k(f"""v_cvt_pk_bf16_f32 v{a}, v{14+ti}, v{14+ti}
        v_lshl_or_b32 v{a+2}, v{56+ti}, 16, v{56+ti}
        v_and_b32 v{a}, 0xffff0000, v{a}
        v_cndmask_b32 v{a+2}, 0, v{a+2}, vcc
        v_sub_f32 v{a+1}, v{14+ti}, v{a}
        v_mov_b32 v{a+3}, 0
        v_cvt_pk_bf16_f32 v{a}, v{a}, v{a+1}
        v_mov_b32 v{a+1}, v{a}""")
    for ti in range(2):
        for tj in range(2):
            a = ACC + 16 * (2*ti + tj)
            k(f"v_mfma_f32_32x32x16_bf16 {R(a,16)}, {R(16+4*ti,4)}, {R(64+8*tj,4)}, {R(a,16)}")
    n = 0
    for ti in range(2):
        for tj in range(2):
            C = R(68 + 8*tj, 2); S = R(70 + 8*tj, 2)
            for j in range(2):
                a = ACC + 16 * (2*ti + tj) + 8*j; t = 24 + 8 * (n & 1); o = 40 + 4 * (n & 1); n += 1
                P = [(R(a+2*p, 2), R(t+2*p, 2)) for p in range(4)]
                for x, y in P: k(f"v_pk_mul_f32 {y}, {x}, {x}")
                for x, y in P: k(f"v_pk_fma_f32 {y}, {y}, {C}, {C} op_sel:[0,1,0] op_sel_hi:[1,1,0]")
                for x, y in P: k(f"v_pk_mul_f32 {y}, {y}, {x}")
                if fill: fill()
                for i in range(8): k(f"v_exp_f32 v{t+i}, v{t+i}")
                for x, y in P: k(f"v_pk_fma_f32 {y}, {y}, {S}, {S} op_sel_hi:[1,0,0]")
                if fill: fill()
                for i in range(8): k(f"v_rcp_f32 v{t+i}, v{t+i}")
                for x, y in P: k(f"v_pk_mul_f32 {y}, {y}, {x}")
                for p in range(4): k(f"v_cvt_pk_bf16_f32 v{o+p}, v{t+2*p}, v{t+2*p+1}")
                k.m(f"buffer_store_dwordx4 {R(o,4)}, v59, {SWS}, {'s84' if tj else 's83'} offen offset:{1024*ti+512*j} {SC}", "hst")

L_U = 131072 + KPAIR; UCH = 4608; L_X = 98304
vUL = 80
def conv_load(k):
    k(f"""s_lshl2_add_u32 s66, {sPAIR}, {sW}
    s_lshl_b32 s66, s66, 11
    s_add_u32 s66, s66, {UT}
    v_lshlrev_b32 v1, 4, v0""")
    for j in range(2): k.m(f"buffer_load_dwordx4 {R(vUL+4*j,4)}, v1, {SWS}, s66 offen offset:{1024*j} {SC}", "ul")
def conv(k, fill=None, after_b1=None, before_b2=None, after_b2=None):
    CA = 16; FB = 96
    k(f"""v_bfe_u32 v2, v0, 2, 1
    v_mul_u32_u24 v2, {UCH}, v2
    v_lshrrev_b32 v3, 3, v0
    v_lshl_add_u32 v2, v3, 6, v2
    v_and_b32 v3, 3, v0
    v_lshl_add_u32 v2, v3, 4, v2
    s_lshl_b32 s66, {sW}, 10
    s_add_u32 s66, s66, {L_U + 512}
    v_add_u32 v2, s66, v2
    s_lshr_b32 s68, {sW}, 1
    s_and_b32 s69, {sW}, 1
    s_mul_i32 s66, s68, {UCH}
    s_add_u32 s66, s66, {L_U}
    s_lshl_b32 s70, s69, 8
    s_add_u32 s67, s66, s70
    v_lshl_add_u32 v3, v0, 2, s67
    v_mov_b32 v4, 0
    ds_write_b32 v3, v4
    s_sub_u32 s66, s66, s70
    s_add_u32 s66, s66, {480-192}
    v_and_b32 v5, 15, v0
    v_lshrrev_b32 v6, 4, v0
    v_lshl_add_u32 v8, v5, 5, s66
    v_lshl_add_u32 v8, v6, 4, v8
    s_mul_i32 s66, s68, {KCH}
    s_add_u32 s66, s66, {sKD}
    s_sub_u32 s66, s66, s70
    s_add_u32 s66, s66, {4064 + KCOPY - 512 - 192}
    v_and_b32 v7, 1, v0
    v_mul_u32_u24 v7, {KCOPY + 4}, v7
    v_and_b32 v9, 14, v0
    v_lshl_add_u32 v7, v9, 1, v7
    v_sub_u32 v7, s66, v7
    v_lshl_add_u32 v9, v6, 4, v7
    v_subrev_u32 v10, 1024, v9
    v_subrev_u32 v11, 2048, v9
    v_subrev_u32 v12, 3072, v9""")
    k.wait("ul")
    k(f"""ds_write_b128 v2, {R(vUL,4)}
    ds_write_b128 v2, {R(vUL+4,4)} offset:512
    v_lshlrev_b32 v13, 6, v5
    v_lshl_add_u32 v13, v6, 4, v13
    s_lshl2_add_u32 s71, {sPAIR}, {sW}
    s_lshl_b32 s71, s71, 11
    s_add_u32 s71, s71, {AT}
    s_lshl_b32 s66, {sW}, 12
    s_add_u32 s66, s66, {L_X}
    v_lshl_add_u32 v14, v0, 4, s66
    v_xor_b32 v15, 4096, v14
    s_waitcnt lgkmcnt(0)
    s_barrier""")
    if after_b1: after_b1()
    def reads(i):
        f = FB + 64 * (i & 1); r = []
        for s in range(8):
            r.append(f"ds_read_b128 {R(f+32+4*s,4)}, v8 offset:{512*s + 64*(3-i)}")
            o = 128 * (1 - (s & 1)) + 16 * (3 - i)
            r.append(f"ds_read2_b32 {R(f+4*s,2)}, v{9+(s>>1)} offset0:{o} offset1:{o+1}")
            r.append(f"ds_read2_b32 {R(f+4*s+2,2)}, v{9+(s>>1)} offset0:{o+2} offset1:{o+3}")
        return r
    for r in reads(0): k(r)
    order = [(s, t) for s in range(8) for t in range(s, 8)]
    order.remove((7, 7)); order.insert(9, (7, 7))
    for i in range(4):
        f = FB + 64 * (i & 1); rd = reads(i + 1) if i < 3 else []
        k("s_waitcnt lgkmcnt(0)")
        for n, (s, t) in enumerate(order):
            a = R(CA + 4*t, 4)
            k(f"v_mfma_f32_16x16x32_bf16 {a}, {R(f+4*s,4)}, {R(f+32+4*(t-s),4)}, {'0' if i == 0 and s == 0 else a}")
            if rd: k(rd.pop(0))
            if fill and n % 3 == 2: fill()
    lj = k.label("cx")
    k(f"s_cmp_eq_u32 s69, 0\ns_nop 6\ns_cbranch_scc1 {lj}")
    for i in range(16): k(f"v_swap_b32 v{CA+i}, v{CA+16+i}")
    k(f"{lj}:")
    for t in range(4): k(f"ds_write_b128 v14, {R(CA+16+4*t,4)} offset:{1024*t}")
    if before_b2: before_b2()
    k("s_waitcnt lgkmcnt(0)\ns_barrier")
    for t in range(4): k(f"ds_read_b128 {R(CA+16+4*t,4)}, v15 offset:{1024*t}")
    if after_b2: after_b2()
    for tp in range(2):
        k(f"s_waitcnt lgkmcnt({2-2*tp})")
        for p in range(4): k(f"v_pk_add_f32 {R(CA+8*tp+2*p,2)}, {R(CA+8*tp+2*p,2)}, {R(CA+16+8*tp+2*p,2)}")
        for p in range(4): k(f"v_cvt_pk_bf16_f32 v{48+4*tp+p}, v{CA+8*tp+2*p}, v{CA+8*tp+2*p+1}")
        k.m(f"buffer_store_dwordx4 {R(48+4*tp,4)}, v13, {SWS}, s71 offen offset:{1024*tp} {SC}", "ast")

vL16, vL16X = 62, 63
def wfrag(i): return R(4*i, 4, "a") if i < 64 else R(232 + 4*(i - 64), 4)
def w2_prefetch(k):
    k(f"""v_lshlrev_b32 v{vL16}, 4, v0
    s_cmp_ge_u32 {sW}, 2
    s_cselect_b32 s66, {OOB}, 0
    v_add_u32 v{vL16X}, s66, v{vL16}
    s_mul_i32 s85, {sCHT}, 54
    s_add_u32 s85, s85, {sW}
    s_mul_i32 s85, s85, 5120
    s_add_u32 s85, s85, {W2P}""")
    def mk(i):
        def f():
            s, c = divmod(i, 5)
            if c == 4: k("s_add_u32 s85, s85, 4096")
            k.m(f"buffer_load_dwordx4 {wfrag(i)}, v{vL16X if s == 13 else vL16}, {SWS}, s85 offen offset:{1024*(c&3)} {SC}", "w2p")
            if c == 4: k(f"s_add_u32 s85, s85, {20480-4096}")
        return f
    return [mk(i) for i in range(70)]
RING = 64
def gemm2(k, hook=None):
    hook = hook or (lambda n: None)
    def hload(j, s):
        if s == 0:
            k(f"""s_add_u32 s66, {sW}, {1+j}
            s_and_b32 s66, s66, 3
            s_lshl2_add_u32 s66, {sTK}, s66
            s_mul_i32 s66, s66, 54
            s_add_u32 s66, s66, {sW}
            s_lshl_b32 s86, s66, 10
            s_add_u32 s86, s86, {H}""")
        else: k("s_add_u32 s86, s86, 4096")
        k.m(f"buffer_load_dwordx4 {R(RING + 56*(j%3) + 4*s, 4)}, v{vL16X if s == 13 else vL16}, {SWS}, s86 offen {SC}", f"h{j}_{s}")
    for j in range(3):
        for s in range(14): hload(j, s)
    k(f"""v_and_b32 v2, 15, v0
    v_lshrrev_b32 v47, 4, v0
    v_lshlrev_b32 v48, 4, v47
    v_lshlrev_b32 v49, 3, v47
    s_mul_i32 s67, {sCHT}, 160
    v_add_u32 v50, s67, v48
    v_add_u32 v51, s67, v49
    s_lshl2_add_u32 s68, {sTK}, {sW}
    s_lshl_b32 s66, s68, 9
    s_add_u32 s66, s66, {ST}
    v_lshlrev_b32 v1, 5, v2""")
    k.m(f"global_load_dwordx4 v[52:55], v50, s[26:27]", "b2")
    k.m(f"global_load_dwordx4 v[56:59], v50, s[26:27] offset:64", "b2")
    k.m(f"global_load_dwordx2 v[60:61], v51, s[26:27] offset:128", "b2")
    k.m(f"buffer_load_dword v1, v1, {SWS}, s66 offen offset:28 {SC}", "b2")
    k(f"""v_mul_u32_u24 v45, 1280, v2
    v_add_u32 v46, v45, v51
    v_add_u32 v45, v45, v50
    s_mul_i32 s87, s68, 20480
    v_lshl_add_u32 v44, v2, 12, v48
    v_and_b32 v3, 12, v0
    v_lshl_add_u32 v3, v3, 12, v44
    s_mul_i32 s88, {sCHT}, {80*4096}
    s_lshr_b32 s66, {sTK}, 3
    s_lshl_b32 s66, s66, 10
    s_add_u32 s88, s88, s66
    s_and_b32 s66, s68, 15
    s_lshl_b32 s66, s66, 6
    s_add_u32 s88, s88, s66
    s_add_u32 s88, s88, {AT}
    v_lshrrev_b32 v48, 2, v2
    v_cmp_eq_u32 vcc, v48, v47
    v_and_b32 v48, 1, v0
    v_lshlrev_b32 v48, 4, v48
    v_mov_b32 v49, 0x3f80
    v_lshlrev_b32 v48, v48, v49
    v_cndmask_b32 v47, 0, v48, vcc
    s_bfe_u32 s66, {sTK}, 0x10002
    s_lshl_b32 s66, s66, 1
    v_bfe_u32 v2, v0, 1, 1
    v_add_u32 v2, s66, v2""")
    for i in range(4): k(f"v_cmp_eq_u32 vcc, {i}, v2\nv_cndmask_b32 v{48+i}, 0, v47, vcc")
    AF = RING + 56; P = [RING + 76, RING + 96, RING + 116]; BB = RING + 136
    pend = []
    for j in range(4):
        acc = 4 + 20 * (j & 1)
        for s in range(14):
            hook((j, s))
            k.wait(f"h{j}_{s}")
            for c in range(5):
                a = R(acc + 4*c, 4)
                k(f"v_mfma_f32_16x16x32_bf16 {a}, {wfrag(5*s+c)}, {R(RING + 56*(j%3) + 4*s, 4)}, {'0' if s == 0 else a}")
                if pend and s >= 1:
                    for _ in range(2):
                        if pend: k(pend.pop(0))
            if j == 0 and s >= 1: hload(3, s - 1)
            if j == 1 and s == 0: hload(3, 13)
            if j == 3 and s == 2:
                k("s_waitcnt lgkmcnt(0)")
                hook("pre_b")
                k("s_barrier")
                for c in range(5):
                    if c in (1, 3): k("s_add_u32 s88, s88, 16384")
                    if c in (2, 4): k(f"s_add_u32 s88, s88, {131072-16384}")
                    k.m(f"buffer_load_dwordx4 {R(AF+4*c,4)}, v{44 if c == 4 else 3}, {SWS}, s88 offen {SC}", "a")
                pend.append(f"s_mul_i32 s66, {sW}, 15360\nv_add_u32 v2, s66, v{vL16}")
                for jj in range(3):
                    for c in range(5): pend.append(f"ds_read_b128 {R(P[jj]+4*c,4)}, v2 offset:{5120*jj+1024*c}")
                for i in range(10): pend += [f"v_lshlrev_b32 v{BB+2*i}, 16, v{52+i}", f"v_and_b32 v{BB+2*i+1}, 0xffff0000, v{52+i}"]
                pend.append("s_waitcnt lgkmcnt(0)")
                for jj in range(3):
                    for i in range(20): pend.append(f"v_add_f32 v{BB+i}, v{BB+i}, v{P[jj]+i}")
        if j < 3:
            pend.append(f"s_add_u32 s66, {sW}, {1+j}\ns_and_b32 s66, s66, 3\ns_mul_i32 s66, s66, 15360\nv_add_u32 v2, s66, v{vL16}")
            for c in range(5): pend.append(f"ds_write_b128 v2, {R(acc+4*c,4)} offset:{5120*j+1024*c}")
    while pend: k(pend.pop(0))
    k.wait("a")
    for c in range(5): k(f"v_mfma_f32_16x16x32_bf16 {R(4+4*c,4)}, {R(AF+4*c,4)}, v[48:51], 0")
    for i in range(10): k(f"v_pk_add_f32 {R(24+2*i,2)}, {R(24+2*i,2)}, {R(BB+2*i,2)}")
    for i in range(10): k(f"v_pk_add_f32 {R(4+2*i,2)}, {R(4+2*i,2)}, {R(24+2*i,2)} neg_lo:[0,1] neg_hi:[0,1]")
    for i in range(10):
        k(f"v_pk_fma_f32 {R(4+2*i,2)}, {R(4+2*i,2)}, v[0:1], {R(24+2*i,2)} op_sel:[0,1,0] op_sel_hi:[1,1,1]")
        k(f"v_cvt_pk_bf16_f32 v{52+i}, v{4+2*i}, v{5+2*i}")
        if i == 3: k.m(f"buffer_store_dwordx4 v[52:55], v45, {SOUT}, s87 offen")
        if i == 7: k.m(f"buffer_store_dwordx4 v[56:59], v45, {SOUT}, s87 offen offset:64")
    k.m(f"buffer_store_dwordx2 v[60:61], v46, {SOUT}, s87 offen offset:128")
```

```python
import re
TRANS = ("v_exp_", "v_log_", "v_rcp_", "v_rsq_", "v_sqrt_", "v_sin_", "v_cos_")
def regs(op):
    op = op.strip().lstrip("-").strip("|")
    m = re.fullmatch(r"([vas])\[(\d+):(\d+)\]", op)
    if m: return {(m[1], i) for i in range(int(m[2]), int(m[3]) + 1)}
    m = re.fullmatch(r"([vas])(\d+)", op)
    if m: return {(m[1], int(m[2]))}
    if op == "vcc": return {("s", "vcc")}
    if op == "m0": return {("s", "m0")}
    if op == "exec": return {("s", "exec")}
    return set()
class I:
    def __init__(s, line):
        s.line = line
        t = line.split(";")[0].strip()
        s.mn = t.split()[0] if t else ""
        rest = re.sub(r"\s\w+:\[[^\]]*\]", " opmod", t[len(s.mn):]).replace("quad_perm", "row_").strip()
        ops = [o.strip() for o in rest.split(",")] if rest else []
        if ops:
            last = ops[-1].split()
            s.mods = " ".join(last[1:]); ops[-1] = last[0]
        else: s.mods = ""
        s.ops = ops
        mn = s.mn
        s.mfma = mn.startswith("v_mfma")
        s.valu = mn.startswith("v_") and not s.mfma
        s.dot = mn.startswith("v_dot")
        s.trans = mn.startswith(TRANS)
        s.vmem = mn.startswith(("buffer_", "global_"))
        s.ds = mn.startswith("ds_")
        s.dpp = "row_" in s.mods or "quad_perm" in s.mods
        s.lds_dma = s.vmem and re.search(r"\blds\b", s.mods) is not None
        R = [regs(o) for o in ops]
        U = lambda l: set().union(*l) if l else set()
        s.w = set(); s.r = set(); s.srcc = set(); s.ab = set(); s.sdata = set()
        if s.mfma:
            s.w = R[0]; s.ab = R[1] | R[2]; s.srcc = R[3]; s.r = s.ab | s.srcc
            s.passes = 8 if "32x32" in mn else 4
        elif s.valu:
            s.w = set(R[0]); s.r = U(R[1:])
            if "swap" in mn: s.w = R[0] | R[1]; s.r = R[0] | R[1]
            if mn.startswith(("v_dot2c", "v_fmac", "v_writelane")) or s.dpp: s.r |= R[0]
            if mn.startswith("v_cndmask") and len(ops) == 3: s.r |= {("s", "vcc")}
        elif s.vmem:
            st = "store" in mn or "atomic" in mn
            if s.lds_dma: s.r = U(R) | {("s", "m0")}
            elif st:
                s.r = U(R)
                if "x4" in mn or "x3" in mn: s.sdata = R[0] if mn.startswith("buffer") else R[1]
            else: s.w = R[0]; s.r = U(R[1:])
        elif s.ds:
            if "read" in mn or "permute" in mn or "swizzle" in mn: s.w = R[0]; s.r = U(R[1:])
            else: s.r = U(R)
        elif mn.startswith("s_") and ops and not mn.startswith(("s_cmp", "s_cbranch", "s_branch", "s_waitcnt", "s_nop", "s_sleep", "s_setprio")):
            s.w = set(R[0]); s.r = U(R[1:])
        s.states = 0 if (not mn or mn.endswith(":") or mn.startswith(".")) else (int(ops[0]) + 1 if mn == "s_nop" else 1)
def need(p, c):
    n = 0
    vw = {x for x in p.w if x[0] in "va"}; sw = {x for x in p.w if x[0] == "s"}
    if p.valu:
        if c.mfma and vw & c.r: n = max(n, 3 if p.dot else 2)
        if c.valu and vw & c.r:
            if c.dpp or "permlane" in c.mn: n = max(n, 2)
            if c.mn.startswith(("v_readlane", "v_readfirstlane")): n = max(n, 1)
            if p.trans: n = max(n, 1)
        if p.dot and vw & (c.r | c.w) and (c.valu or c.vmem or c.ds):
            same = c.mn == p.mn and not (vw & set().union(*[regs(o) for o in c.ops[1:3]]))
            if not same: n = max(n, 3)
        if sw & c.r:
            if c.vmem: n = max(n, 5)
            if c.valu: n = max(n, 4 if "lane" in c.mn else 2)
    if p.mfma:
        big = 12 if p.passes == 8 else 8
        if c.mfma:
            if vw & c.ab: n = max(n, big)
            if vw & c.srcc and not (c.srcc == vw and c.passes == p.passes): n = max(n, big - 2)
            if vw & c.w and not (c.w == vw and c.passes == p.passes): n = max(n, big - 2)
        elif vw & (c.r | c.w): n = max(n, big)
        if c.valu and p.srcc & c.w: n = max(n, 7 if p.passes == 8 else 3)
    if p.sdata & c.w: n = max(n, 2)
    if p.mn.startswith("s_") and ("s", "m0") in p.w and (c.lds_dma or "addtid" in c.mn): n = max(n, 1)
    return n
def fix(lines, verbose=False):
    out = []; hist = []
    for l in lines:
        c = I(l)
        if c.states:
            dist = 0; add = 0
            for p in reversed(hist):
                add = max(add, need(p, c) - dist)
                dist += p.states
                if dist >= 12: break
            if add > 0:
                if verbose: print("nop", add, "before", l.strip())
                nop = I(f"    s_nop {add-1}"); out.append(nop.line); hist.append(nop)
            hist.append(c)
        out.append(l)
    return out
```

```python
import sys
from g1 import *
from asmlib import build
import haz
NAME = "gated_mix__ssm_conv_s4d__mixer_channel_mlp__prompt"
HDR = [l.rstrip("\n") for l in open(f"cdna_kernels/{NAME}.s.ref") if l.startswith(";") and "@launch" not in l and "Override" not in l and "Harness parses" not in l]
def fin(k):
    k(f"{k.name}_end:\ns_endpgm")
    k.lines = haz.fix(k.lines, "-v" in sys.argv); return k
def newk(n): return G(n, vgpr=512, sgpr=102, accum=256)
def kloop(k, **kw):
    l, e = k.label("kl"), k.label("kx")
    k(f"{l}:")
    kgen(k, **kw)
    k(f"s_sub_u32 {sCNT}, {sCNT}, 1\ns_cmp_eq_u32 {sCNT}, 0\ns_cbranch_scc1 {e}")
    for i in range(12): k(f"v_mov_b32 v{KP+i}, v{KP+6+i}")
    k(f"s_add_u32 {sKD}, {sKD}, {KPAIR}\ns_branch {l}\n{e}:")
def multi(rot=0, pad=0):
    a = newk("pa_kernel"); prologue(a); side_addr(a); srds(a); side_load(a); side_addr2(a); a.wait0(); side_do(a); fin(a)
    k = newk("pb_kernel"); prologue(k); kgen_addr(k); g1_addr(k, rot); srds(k); kgen_load(k, 0)
    k(f"s_cmp_ge_u32 {sI}, 28\ns_cbranch_scc1 pb_f0")
    for st in range(3):
        for f in g1_dma(k, st): f()
    k.wait("side"); vm = list(k.vm)
    k(f"s_mov_b32 {sKD}, {L_KD}\ns_mov_b32 {sCNT}, 1\ns_branch pb_j0\npb_f0:")
    kgen_load(k, 1); kgen_load(k, 2); k.wait0(); k.vm = vm
    k(f"s_mov_b32 {sKD}, 0\ns_mov_b32 {sCNT}, 3\npb_j0:")
    def ab2():
        k(f"s_cmp_ge_u32 {sI}, 28\ns_cbranch_scc1 pb_f1")
        for f in g1_dma(k, 3): f()
        k("pb_f1:")
    kloop(k, after_b2=ab2)
    k(f"s_cmp_ge_u32 {sI}, 28\ns_cbranch_scc1 pb_f2")
    gemm1(k)
    k(f"s_mov_b32 {sCNT}, 1\ns_branch pb_c\npb_f2:\ns_mov_b32 {sKD}, 0\ns_mov_b32 {sCNT}, 3\npb_c:")
    conv_load(k); conv(k)
    k(f"s_add_u32 {sPAIR}, {sPAIR}, 1\ns_add_u32 {sKD}, {sKD}, {KPAIR}\ns_sub_u32 {sCNT}, {sCNT}, 1\ns_cmp_lg_u32 {sCNT}, 0\ns_cbranch_scc1 pb_c")
    fin(k)
    c = newk("pc_kernel"); prologue(c); srds(c)
    for f in w2_prefetch(c): f()
    gemm2(c); fin(c)
    ks = [a, k, c]; names = [x.name for x in ks]
    if pad:
        z = newk("pz_kernel"); fin(z); ks.append(z); names = names[:1] + ["pz_kernel"] * pad + names[1:]
    return build(HDR + [f"; @launch kernel={n} grid=(256,1,1) block=(256,1,1) lds=163840" for n in names], ks)
if __name__ == "__main__":
    mode = sys.argv[1]; out = sys.argv[2]; kw = {a.split("=")[0]: int(a.split("=")[1]) for a in sys.argv[3:] if "=" in a}
    for a in list(kw):
        if a.startswith("x"): X[a[1:]] = kw.pop(a)
    if mode == "single":
        from single import single
        s = single(**kw)
    else: s = multi(**kw)
    open(out, "w").write(s)
```

```python
import re
TRANS = ("v_exp_", "v_log_", "v_rcp_", "v_rsq_", "v_sqrt_", "v_sin_", "v_cos_")
def regs(op):
    op = op.strip().lstrip("-").strip("|")
    m = re.fullmatch(r"([vas])\[(\d+):(\d+)\]", op)
    if m: return {(m[1], i) for i in range(int(m[2]), int(m[3]) + 1)}
    m = re.fullmatch(r"([vas])(\d+)", op)
    if m: return {(m[1], int(m[2]))}
    if op == "vcc": return {("s", "vcc")}
    if op == "m0": return {("s", "m0")}
    if op == "exec": return {("s", "exec")}
    return set()
class I:
    def __init__(s, line):
        s.line = line
        t = line.split(";")[0].strip()
        s.mn = t.split()[0] if t else ""
        rest = t[len(s.mn):].strip()
        ops = [o.strip() for o in rest.split(",")] if rest else []
        if ops:
            last = ops[-1].split()
            s.mods = " ".join(last[1:]); ops[-1] = last[0]
        else: s.mods = ""
        s.ops = ops
        mn = s.mn
        s.mfma = mn.startswith("v_mfma")
        s.valu = mn.startswith("v_") and not s.mfma
        s.dot = mn.startswith("v_dot")
        s.trans = mn.startswith(TRANS)
        s.vmem = mn.startswith(("buffer_", "global_"))
        s.ds = mn.startswith("ds_")
        s.dpp = "row_" in s.mods or "quad_perm" in s.mods
        s.lds_dma = s.vmem and re.search(r"\blds\b", s.mods) is not None
        R = [regs(o) for o in ops]
        U = lambda l: set().union(*l) if l else set()
        s.w = set(); s.r = set(); s.srcc = set(); s.ab = set(); s.sdata = set()
        if s.mfma:
            s.w = R[0]; s.ab = R[1] | R[2]; s.srcc = R[3]; s.r = s.ab | s.srcc
            s.passes = 8 if "32x32" in mn else 4
        elif s.valu:
            s.w = set(R[0]); s.r = U(R[1:])
            if "swap" in mn: s.w = R[0] | R[1]; s.r = R[0] | R[1]
            if mn.startswith(("v_dot2c", "v_fmac", "v_writelane")) or s.dpp: s.r |= R[0]
            if mn.startswith("v_cndmask") and len(ops) == 3: s.r |= {("s", "vcc")}
        elif s.vmem:
            st = "store" in mn or "atomic" in mn
            if s.lds_dma: s.r = U(R) | {("s", "m0")}
            elif st:
                s.r = U(R)
                if "x4" in mn or "x3" in mn: s.sdata = R[0] if mn.startswith("buffer") else R[1]
            else: s.w = R[0]; s.r = U(R[1:])
        elif s.ds:
            if "read" in mn or "permute" in mn or "swizzle" in mn: s.w = R[0]; s.r = U(R[1:])
            else: s.r = U(R)
        elif mn.startswith("s_") and ops and not mn.startswith(("s_cmp", "s_cbranch", "s_branch", "s_waitcnt", "s_nop", "s_sleep", "s_setprio")):
            s.w = set(R[0]); s.r = U(R[1:])
        s.states = 0 if (not mn or mn.endswith(":") or mn.startswith(".")) else (int(ops[0]) + 1 if mn == "s_nop" else 1)
def need(p, c):
    n = 0
    vw = {x for x in p.w if x[0] in "va"}; sw = {x for x in p.w if x[0] == "s"}
    if p.valu:
        if c.mfma and vw & c.r: n = max(n, 3 if p.dot else 2)
        if c.valu and vw & c.r:
            if c.dpp or "permlane" in c.mn: n = max(n, 2)
            if c.mn.startswith(("v_readlane", "v_readfirstlane")): n = max(n, 1)
            if p.trans: n = max(n, 1)
        if p.dot and vw & (c.r | c.w) and (c.valu or c.vmem or c.ds):
            same = c.mn == p.mn and not (vw & set().union(*[regs(o) for o in c.ops[1:3]]))
            if not same: n = max(n, 3)
        if sw & c.r:
            if c.vmem: n = max(n, 5)
            if c.valu: n = max(n, 4 if "lane" in c.mn else 2)
    if p.mfma:
        big = 12 if p.passes == 8 else 8
        if c.mfma:
            if vw & c.ab: n = max(n, big)
            if vw & c.srcc and not (c.srcc == vw and c.passes == p.passes): n = max(n, big - 2)
            if vw & c.w and not (c.w == vw and c.passes == p.passes): n = max(n, big - 2)
        elif vw & (c.r | c.w): n = max(n, big)
        if c.valu and p.srcc & c.w: n = max(n, 7 if p.passes == 8 else 3)
    if p.sdata & c.w: n = max(n, 2)
    if p.mn.startswith("s_") and ("s", "m0") in p.w and (c.lds_dma or "addtid" in c.mn): n = max(n, 1)
    return n
def fix(lines, verbose=False):
    out = []; hist = []
    for l in lines:
        c = I(l)
        if c.states:
            dist = 0; add = 0
            for p in reversed(hist):
                add = max(add, need(p, c) - dist)
                dist += p.states
                if dist >= 12: break
            if add > 0:
                if verbose: print("nop", add, "before", l.strip())
                nop = I(f"    s_nop {add-1}"); out.append(nop.line); hist.append(nop)
            hist.append(c)
        out.append(l)
    return out
```

```python
from g0 import *
vXO, vWO = 88, 89
sXS, sWS_, sKK, sM0 = "s77", "s78", "s79", "s80"
def g1_addr(k, rot):
    k(f"""v_lshrrev_b32 v90, 3, v0
    v_lshrrev_b32 v91, 4, v0
    s_lshl_b32 s66, {sW}, 2
    v_xor_b32 v92, v0, v91
    v_xor_b32 v92, s66, v92
    v_and_b32 v92, 7, v92
    v_mul_u32_u24 v90, 1280, v90
    v_lshl_add_u32 v{vXO}, v92, 4, v90
    v_lshlrev_b32 v92, 2, v91
    v_xor_b32 v92, v0, v92
    v_and_b32 v92, 15, v92
    v_mul_u32_u24 v91, 3456, v91
    v_lshl_add_u32 v{vWO}, v92, 4, v91
    s_cmp_eq_u32 {sCT}, 13
    s_cselect_b32 s66, 7, 15
    v_cmp_lt_u32 vcc, s66, v92
    v_mov_b32 v90, {OOB}
    s_mul_i32 {sXS}, {sRB}, 163840
    s_mul_i32 s66, {sW}, 10240
    s_add_u32 {sXS}, {sXS}, s66
    s_lshl_b32 {sWS_}, {sCT}, 8
    s_mul_i32 s66, {sW}, 13824
    s_add_u32 {sWS_}, {sWS_}, s66
    s_lshl_b32 {sM0}, {sW}, 10
    v_cndmask_b32 v{vWO}, v{vWO}, v90, vcc""")
    if rot:
        k(f"""s_mul_i32 s66, {sRB}, 3
        s_mul_i32 s67, {sCT}, {rot}
        s_add_u32 s66, s66, s67
        s_mul_i32 s67, s66, 6554
        s_lshr_b32 s67, s67, 16
        s_mul_i32 s67, s67, 10
        s_sub_u32 {sKK}, s66, s67""")
    else: k(f"s_mov_b32 {sKK}, 0")
def g1_dma(k, st):
    buf = (st % 4) * 32768; out = []
    def mk(i):
        def f():
            x = i < 4; j = i & 3
            if i == 0: k(f"s_lshl_b32 s81, {sKK}, 7\ns_add_u32 s81, s81, {sXS}")
            elif i == 4: k(f"s_mul_i32 s81, {sKK}, 221184\ns_add_u32 s81, s81, {sWS_}\ns_add_u32 {sKK}, {sKK}, 1\ns_cmp_eq_u32 {sKK}, 10\ns_cselect_b32 {sKK}, 0, {sKK}")
            k(f"s_add_u32 m0, {sM0}, {buf + (0 if x else 16384) + 4096*j}")
            if j: k(f"s_add_u32 s81, s81, {40960 if x else 55296}")
            k.m(f"buffer_load_dwordx4 v{vXO if x else vWO}, {SU if x else SW1}, s81 offen lds", f"g{st}")
        return f
    return [mk(i) for i in range(8)]
ACC = 96; FR = 16
def gemm1(k, poll=None, fill=None):
    XA, WA = 2, 10
    k(f"""v_and_b32 v48, 31, v0
    v_lshrrev_b32 v49, 5, v0
    v_bfe_u32 v50, v0, 1, 3
    v_xor_b32 v50, v50, v49
    s_and_b32 s66, {sW}, 1
    s_lshl_b32 s66, s66, 13
    v_lshl_add_u32 v51, v48, 7, s66""")
    for ks in range(4):
        k(f"v_xor_b32 v52, {2*ks}, v50\nv_lshl_add_u32 v{XA+ks}, v52, 4, v51\nv_add_u32 v{XA+4+ks}, 0x10000, v{XA+ks}")
    k(f"""v_bfe_u32 v50, v0, 2, 2
    v_lshl_add_u32 v51, v49, 3, v50
    v_lshlrev_b32 v51, 8, v51
    s_and_b32 s66, {sW}, 2
    v_xor_b32 v50, s66, v50
    v_lshl_add_u32 v51, v50, 6, v51
    v_and_b32 v50, 16, v0
    v_lshl_add_u32 v51, v50, 1, v51
    v_and_b32 v50, 3, v0
    v_lshl_add_u32 v51, v50, 3, v51
    v_add_u32 v{WA}, 16384, v51
    v_xor_b32 v{WA+1}, 64, v{WA}
    v_add_u32 v{WA+2}, 0x10000, v{WA}
    v_add_u32 v{WA+3}, 0x10000, v{WA+1}
    v_mov_b32 v14, 0
    v_mov_b32 v15, 0""")
    k(f"""s_lshr_b32 s66, {sW}, 1
    s_lshl1_add_u32 s66, {sCT}, s66
    s_lshl_b32 s67, s66, 7
    v_lshl_add_u32 v50, v48, 1, s67
    v_min_u32 v50, {3456-66}, v50
    s_and_b32 s68, {sW}, 1
    s_lshl1_add_u32 s68, {sRB}, s68
    s_lshl_b32 s82, s68, 11
    s_add_u32 s82, s82, {ST}
    v_lshlrev_b32 v58, 5, v48
    s_mul_i32 s83, s68, {4*55296}
    s_lshl_b32 s67, s66, 11
    s_add_u32 s83, s83, s67
    s_add_u32 s83, s83, {H}
    s_cmp_eq_u32 s66, 27
    s_cselect_b32 s83, {OOB}, s83
    s_add_u32 s84, s83, {2*55296}
    v_bfe_u32 v51, v0, 4, 1
    v_mul_u32_u24 v51, 55296, v51
    v_lshl_add_u32 v51, v49, 8, v51
    v_and_b32 v52, 15, v0
    v_lshl_add_u32 v59, v52, 4, v51""")
    k.m("global_load_ushort v56, v50, s[22:23]", "b1")
    k.m("global_load_ushort v57, v50, s[22:23] offset:64", "b1")
    def reads(g):
        st, ks = divmod(g, 4); up = (st % 4) >> 1; o = (st & 1) * 32768; f = FR + 16 * (g & 1)
        r = []
        for ti in range(2):
            for e in range(2): r.append(f"ds_read_b64_tr_b16 {R(f+4*ti+2*e,2)}, v{WA+2*up+ti} offset:{o + (16*ks+4*e)*256}")
        for tj in range(2): r.insert(2 + 3*tj, f"ds_read_b128 {R(f+8+4*tj,4)}, v{XA+4*up+ks} offset:{o + 4096*tj}")
        return r
    k.wait("g0"); k("s_barrier")
    for r in reads(0): k(r)
    dq = []
    for g in range(40):
        st, ks = divmod(g, 4); f = FR + 16 * (g & 1)
        def mf(ti, tj):
            a = ACC + 16 * (2*ti + tj)
            k(f"v_mfma_f32_32x32x16_bf16 {R(a,16)}, {R(f+4*ti,4)}, {R(f+8+4*tj,4)}, {'0' if g == 0 else R(a,16)}")
        rd = reads(g + 1) if g < 39 else []
        k("s_waitcnt lgkmcnt(0)")
        mf(0, 0)
        if ks == 3 and st < 9:
            k.wait(f"g{st+1}")
            if poll and st == 8: poll(1)
            k("s_barrier")
            if st + 4 < 10: dq += g1_dma(k, st + 4)
            if st == 8:
                for tj in range(2):
                    for h in range(2): k.m(f"buffer_load_dwordx4 {R(64+8*tj+4*h,4)}, v58, {SWS}, s82 offen offset:{1024*tj+16*h} {SC}", "st")
        if poll and g == 28: poll(0)
        for r in rd[:3]: k(r)
        mf(1, 0)
        for r in rd[3:]: k(r)
        if dq: dq.pop(0)()
        mf(0, 1)
        for i in range(4): k(f"v_dot2c_f32_bf16 v14, {sONE}, v{f+i}")
        if dq: dq.pop(0)()
        mf(1, 1)
        for i in range(4): k(f"v_dot2c_f32_bf16 v15, {sONE}, v{f+4+i}")
    k(f"v_cmp_gt_u32 vcc, 32, v0")
    k.wait("st")
    for ti in range(2):
        a = 16 + 4*ti
        k(f"""v_cvt_pk_bf16_f32 v{a}, v{14+ti}, v{14+ti}
        v_lshl_or_b32 v{a+2}, v{56+ti}, 16, v{56+ti}
        v_and_b32 v{a}, 0xffff0000, v{a}
        v_cndmask_b32 v{a+2}, 0, v{a+2}, vcc
        v_sub_f32 v{a+1}, v{14+ti}, v{a}
        v_mov_b32 v{a+3}, 0
        v_cvt_pk_bf16_f32 v{a}, v{a}, v{a+1}
        v_mov_b32 v{a+1}, v{a}""")
    for ti in range(2):
        for tj in range(2):
            a = ACC + 16 * (2*ti + tj)
            k(f"v_mfma_f32_32x32x16_bf16 {R(a,16)}, {R(16+4*ti,4)}, {R(64+8*tj,4)}, {R(a,16)}")
    n = 0
    for ti in range(2):
        for tj in range(2):
            C = R(68 + 8*tj, 2); S = R(70 + 8*tj, 2)
            for j in range(2):
                a = ACC + 16 * (2*ti + tj) + 8*j; t = 24 + 8 * (n & 1); o = 40 + 4 * (n & 1); n += 1
                P = [(R(a+2*p, 2), R(t+2*p, 2)) for p in range(4)]
                for x, y in P: k(f"v_pk_mul_f32 {y}, {x}, {x}")
                for x, y in P: k(f"v_pk_fma_f32 {y}, {y}, {C}, {C} op_sel:[0,1,0] op_sel_hi:[1,1,0]")
                for x, y in P: k(f"v_pk_mul_f32 {y}, {y}, {x}")
                if fill: fill()
                for i in range(8): k(f"v_exp_f32 v{t+i}, v{t+i}")
                for x, y in P: k(f"v_pk_fma_f32 {y}, {y}, {S}, {S} op_sel_hi:[1,0,0]")
                if fill: fill()
                for i in range(8): k(f"v_rcp_f32 v{t+i}, v{t+i}")
                for x, y in P: k(f"v_pk_mul_f32 {y}, {y}, {x}")
                for p in range(4): k(f"v_cvt_pk_bf16_f32 v{o+p}, v{t+2*p}, v{t+2*p+1}")
                k.m(f"buffer_store_dwordx4 {R(o,4)}, v59, {SWS}, {'s84' if tj else 's83'} offen offset:{1024*ti+512*j} {SC}", "hst")

L_U = 131072 + KPAIR; UCH = 4608; L_X = 98304
vUL = 80
def conv_load(k):
    k(f"""s_lshl2_add_u32 s66, {sPAIR}, {sW}
    s_lshl_b32 s66, s66, 11
    s_add_u32 s66, s66, {UT}
    v_lshlrev_b32 v1, 4, v0""")
    for j in range(2): k.m(f"buffer_load_dwordx4 {R(vUL+4*j,4)}, v1, {SWS}, s66 offen offset:{1024*j} {SC}", "ul")
def conv(k, fill=None, after_b1=None, before_b2=None, after_b2=None):
    CA = 16; FB = 96
    k(f"""v_bfe_u32 v2, v0, 2, 1
    v_mul_u32_u24 v2, {UCH}, v2
    v_lshrrev_b32 v3, 3, v0
    v_lshl_add_u32 v2, v3, 6, v2
    v_and_b32 v3, 3, v0
    v_lshl_add_u32 v2, v3, 4, v2
    s_lshl_b32 s66, {sW}, 10
    s_add_u32 s66, s66, {L_U + 512}
    v_add_u32 v2, s66, v2
    s_lshr_b32 s68, {sW}, 1
    s_and_b32 s69, {sW}, 1
    s_mul_i32 s66, s68, {UCH}
    s_add_u32 s66, s66, {L_U}
    s_lshl_b32 s70, s69, 8
    s_add_u32 s67, s66, s70
    v_lshl_add_u32 v3, v0, 2, s67
    v_mov_b32 v4, 0
    ds_write_b32 v3, v4
    s_sub_u32 s66, s66, s70
    s_add_u32 s66, s66, {480-192}
    v_and_b32 v5, 15, v0
    v_lshrrev_b32 v6, 4, v0
    v_lshl_add_u32 v8, v5, 5, s66
    v_lshl_add_u32 v8, v6, 4, v8
    s_mul_i32 s66, s68, {KCH}
    s_add_u32 s66, s66, {sKD}
    s_sub_u32 s66, s66, s70
    s_add_u32 s66, s66, {4064 + KCOPY - 512 - 192}
    v_and_b32 v7, 1, v0
    v_mul_u32_u24 v7, {KCOPY + 4}, v7
    v_and_b32 v9, 14, v0
    v_lshl_add_u32 v7, v9, 1, v7
    v_sub_u32 v7, s66, v7
    v_lshl_add_u32 v9, v6, 4, v7
    v_subrev_u32 v10, 1024, v9
    v_subrev_u32 v11, 2048, v9
    v_subrev_u32 v12, 3072, v9""")
    k.wait("ul")
    k(f"""ds_write_b128 v2, {R(vUL,4)}
    ds_write_b128 v2, {R(vUL+4,4)} offset:512
    v_lshlrev_b32 v13, 6, v5
    v_lshl_add_u32 v13, v6, 4, v13
    s_lshl2_add_u32 s71, {sPAIR}, {sW}
    s_lshl_b32 s71, s71, 11
    s_add_u32 s71, s71, {AT}
    s_lshl_b32 s66, {sW}, 12
    s_add_u32 s66, s66, {L_X}
    v_lshl_add_u32 v14, v0, 4, s66
    v_xor_b32 v15, 4096, v14
    s_waitcnt lgkmcnt(0)
    s_barrier""")
    if after_b1: after_b1()
    def reads(i):
        f = FB + 64 * (i & 1); r = []
        for s in range(8):
            r.append(f"ds_read_b128 {R(f+32+4*s,4)}, v8 offset:{512*s + 64*(3-i)}")
            o = 128 * (1 - (s & 1)) + 16 * (3 - i)
            r.append(f"ds_read2_b32 {R(f+4*s,2)}, v{9+(s>>1)} offset0:{o} offset1:{o+1}")
            r.append(f"ds_read2_b32 {R(f+4*s+2,2)}, v{9+(s>>1)} offset0:{o+2} offset1:{o+3}")
        return r
    for r in reads(0): k(r)
    order = [(s, t) for s in range(8) for t in range(s, 8)]
    order.remove((7, 7)); order.insert(9, (7, 7))
    for i in range(4):
        f = FB + 64 * (i & 1); rd = reads(i + 1) if i < 3 else []
        k("s_waitcnt lgkmcnt(0)")
        for n, (s, t) in enumerate(order):
            a = R(CA + 4*t, 4)
            k(f"v_mfma_f32_16x16x32_bf16 {a}, {R(f+4*s,4)}, {R(f+32+4*(t-s),4)}, {'0' if i == 0 and s == 0 else a}")
            if rd: k(rd.pop(0))
            if fill and n % 3 == 2: fill()
    lj = k.label("cx")
    k(f"s_cmp_eq_u32 s69, 0\ns_nop 6\ns_cbranch_scc1 {lj}")
    for i in range(16): k(f"v_swap_b32 v{CA+i}, v{CA+16+i}")
    k(f"{lj}:")
    for t in range(4): k(f"ds_write_b128 v14, {R(CA+16+4*t,4)} offset:{1024*t}")
    if before_b2: before_b2()
    k("s_waitcnt lgkmcnt(0)\ns_barrier")
    for t in range(4): k(f"ds_read_b128 {R(CA+16+4*t,4)}, v15 offset:{1024*t}")
    if after_b2: after_b2()
    for tp in range(2):
        k(f"s_waitcnt lgkmcnt({2-2*tp})")
        for p in range(4): k(f"v_pk_add_f32 {R(CA+8*tp+2*p,2)}, {R(CA+8*tp+2*p,2)}, {R(CA+16+8*tp+2*p,2)}")
        for p in range(4): k(f"v_cvt_pk_bf16_f32 v{48+4*tp+p}, v{CA+8*tp+2*p}, v{CA+8*tp+2*p+1}")
        k.m(f"buffer_store_dwordx4 {R(48+4*tp,4)}, v13, {SWS}, s71 offen offset:{1024*tp} {SC}", "ast")

vL16, vL16X = 230, 231
def wfrag(i): return R(4*i, 4, "a") if i < 64 else R(232 + 4*(i - 64), 4)
def w2_prefetch(k):
    k(f"""v_lshlrev_b32 v{vL16}, 4, v0
    s_cmp_ge_u32 {sW}, 2
    s_cselect_b32 s66, {OOB}, 0
    v_add_u32 v{vL16X}, s66, v{vL16}
    s_mul_i32 s85, {sCHT}, 54
    s_add_u32 s85, s85, {sW}
    s_mul_i32 s85, s85, 5120
    s_add_u32 s85, s85, {W2P}""")
    def mk(i):
        def f():
            s, c = divmod(i, 5)
            if c == 4: k("s_add_u32 s85, s85, 4096")
            k.m(f"buffer_load_dwordx4 {wfrag(i)}, v{vL16X if s == 13 else vL16}, {SWS}, s85 offen offset:{1024*(c&3)} {SC}", "w2p")
            if c == 4: k(f"s_add_u32 s85, s85, {20480-4096}")
        return f
    return [mk(i) for i in range(70)]
RING = 56
def gemm2(k, hook=None):
    hook = hook or (lambda n: None)
    def hload(j, s):
        if s == 0:
            k(f"""s_add_u32 s66, {sW}, {1+j}
            s_and_b32 s66, s66, 3
            s_lshl2_add_u32 s66, {sTK}, s66
            s_mul_i32 s66, s66, 54
            s_add_u32 s66, s66, {sW}
            s_lshl_b32 s86, s66, 10
            s_add_u32 s86, s86, {H}""")
        else: k("s_add_u32 s86, s86, 4096")
        k.m(f"buffer_load_dwordx4 {R(RING + 56*(j%3) + 4*s, 4)}, v{vL16X if s == 13 else vL16}, {SWS}, s86 offen {SC}", f"h{j}_{s}")
    for j in range(3):
        for s in range(14): hload(j, s)
    k(f"""v_and_b32 v2, 15, v0
    v_lshrrev_b32 v47, 4, v0
    v_lshlrev_b32 v48, 4, v47
    v_lshlrev_b32 v49, 3, v47
    s_mul_i32 s67, {sCHT}, 160
    v_add_u32 v52, s67, v48
    v_add_u32 v53, s67, v49
    s_lshl2_add_u32 s68, {sTK}, {sW}
    s_lshl_b32 s66, s68, 9
    s_add_u32 s66, s66, {ST}
    v_lshlrev_b32 v1, 5, v2""")
    k.m(f"buffer_load_dword v1, v1, {SWS}, s66 offen offset:28 {SC}", "b2")
    k(f"""v_mul_u32_u24 v45, 1280, v2
    v_add_u32 v46, v45, v53
    v_add_u32 v45, v45, v52
    s_mul_i32 s87, s68, 20480
    v_lshl_add_u32 v44, v2, 12, v48
    v_and_b32 v3, 12, v0
    v_lshl_add_u32 v3, v3, 12, v44
    s_mul_i32 s88, {sCHT}, {80*4096}
    s_lshr_b32 s66, {sTK}, 3
    s_lshl_b32 s66, s66, 10
    s_add_u32 s88, s88, s66
    s_and_b32 s66, s68, 15
    s_lshl_b32 s66, s66, 6
    s_add_u32 s88, s88, s66
    s_add_u32 s88, s88, {AT}
    v_lshrrev_b32 v48, 2, v2
    v_cmp_eq_u32 vcc, v48, v47
    v_and_b32 v48, 1, v0
    v_lshlrev_b32 v48, 4, v48
    v_mov_b32 v49, 0x3f80
    v_lshlrev_b32 v48, v48, v49
    v_cndmask_b32 v47, 0, v48, vcc
    s_bfe_u32 s66, {sTK}, 0x10002
    s_lshl_b32 s66, s66, 1
    v_bfe_u32 v2, v0, 1, 1
    v_add_u32 v2, s66, v2""")
    for i in range(4): k(f"v_cmp_eq_u32 vcc, {i}, v2\nv_cndmask_b32 v{48+i}, 0, v47, vcc")
    B2 = RING + 56; AF = RING + 68; P = [RING + 88, RING + 108, RING + 128]; BB = RING + 148
    pend = []
    for j in range(4):
        acc = 4 + 20 * (j & 1)
        for s in range(14):
            hook((j, s))
            k.wait(f"h{j}_{s}")
            for c in range(5):
                a = R(acc + 4*c, 4)
                k(f"v_mfma_f32_16x16x32_bf16 {a}, {wfrag(5*s+c)}, {R(RING + 56*(j%3) + 4*s, 4)}, {'0' if s == 0 else a}")
                if pend and s >= 1:
                    for _ in range(2):
                        if pend: k(pend.pop(0))
            if j == 0 and s >= 1: hload(3, s - 1)
            if j == 1 and s == 0: hload(3, 13)
            if j == 2 and s == 0:
                k.m(f"global_load_dwordx4 {R(B2,4)}, v52, s[26:27]", "b2")
                k.m(f"global_load_dwordx4 {R(B2+4,4)}, v52, s[26:27] offset:64", "b2")
                k.m(f"global_load_dwordx2 {R(B2+8,2)}, v53, s[26:27] offset:128", "b2")
            if j == 3 and s == 2:
                k.wait("b2", "lgkmcnt(0)")
                hook("pre_b")
                k("s_barrier")
                for c in range(5):
                    if c in (1, 3): k("s_add_u32 s88, s88, 16384")
                    if c in (2, 4): k(f"s_add_u32 s88, s88, {131072-16384}")
                    k.m(f"buffer_load_dwordx4 {R(AF+4*c,4)}, v{44 if c == 4 else 3}, {SWS}, s88 offen {SC}", "a")
                pend.append(f"s_mul_i32 s66, {sW}, 15360\nv_add_u32 v2, s66, v{vL16}")
                for jj in range(3):
                    for c in range(5): pend.append(f"ds_read_b128 {R(P[jj]+4*c,4)}, v2 offset:{5120*jj+1024*c}")
                for i in range(10): pend += [f"v_lshlrev_b32 v{BB+2*i}, 16, v{B2+i}", f"v_and_b32 v{BB+2*i+1}, 0xffff0000, v{B2+i}"]
                pend.append("s_waitcnt lgkmcnt(0)")
                for jj in range(3):
                    for i in range(20): pend.append(f"v_add_f32 v{BB+i}, v{BB+i}, v{P[jj]+i}")
        if j < 3:
            pend.append(f"s_add_u32 s66, {sW}, {1+j}\ns_and_b32 s66, s66, 3\ns_mul_i32 s66, s66, 15360\nv_add_u32 v2, s66, v{vL16}")
            for c in range(5): pend.append(f"ds_write_b128 v2, {R(acc+4*c,4)} offset:{5120*j+1024*c}")
    while pend: k(pend.pop(0))
    k.wait("a")
    for c in range(5): k(f"v_mfma_f32_16x16x32_bf16 {R(4+4*c,4)}, {R(AF+4*c,4)}, v[48:51], 0")
    for i in range(10): k(f"v_pk_add_f32 {R(24+2*i,2)}, {R(24+2*i,2)}, {R(BB+2*i,2)}")
    for i in range(10): k(f"v_pk_add_f32 {R(4+2*i,2)}, {R(4+2*i,2)}, {R(24+2*i,2)} neg_lo:[0,1] neg_hi:[0,1]")
    for i in range(10):
        k(f"v_pk_fma_f32 {R(4+2*i,2)}, {R(4+2*i,2)}, v[0:1], {R(24+2*i,2)} op_sel:[0,1,0] op_sel_hi:[1,1,1]")
        k(f"v_cvt_pk_bf16_f32 v{B2+i}, v{4+2*i}, v{5+2*i}")
        if i == 3: k.m(f"buffer_store_dwordx4 {R(B2,4)}, v45, {SOUT}, s87 offen")
        if i == 7: k.m(f"buffer_store_dwordx4 {R(B2+4,4)}, v45, {SOUT}, s87 offen offset:64")
    k.m(f"buffer_store_dwordx2 {R(B2+8,2)}, v46, {SOUT}, s87 offen offset:128")
```

```python
from gen import *
SDB = "s[92:95]"
vPO, vPE, vPG, vSO, vS1 = 224, 225, 226, 227, 228
def stamp(k, n, on):
    if on: k(f"s_memrealtime s[96:97]\ns_waitcnt lgkmcnt(0)\nv_writelane_b32 v229, s96, {n}")
def poll_setup(k, nl, target):
    k(f"""s_cmp_eq_u32 {sW}, 0
    s_cselect_b32 s89, {nl}, 0
    v_cmp_gt_u32 s[90:91], s89, v0
    v_lshlrev_b32 v{vPO}, 8, v0
    v_mov_b32 v{vPE}, {OOB}
    v_cndmask_b32 v{vPO}, v{vPE}, v{vPO}, s[90:91]
    v_cndmask_b32 v{vPE}, 0, {target}, s[90:91]""")
def poll_issue(k, srd, so): k.m(f"buffer_load_dword v{vPG}, v{vPO}, {srd}, {so} offen sc1", "poll")
def poll_check(k, srd, so):
    l, d = k.label("sp"), k.label("sd")
    k.wait("poll")
    k(f"""s_mov_b32 s89, 0x20000
    {l}:
    v_cmp_ne_u32 s[90:91], v{vPE}, v{vPG}
    s_sub_u32 s89, s89, 1
    s_cselect_b64 s[90:91], 0, s[90:91]
    s_cmp_eq_u64 s[90:91], 0
    s_cbranch_scc1 {d}
    buffer_load_dword v{vPG}, v{vPO}, {srd}, {so} offen sc1
    s_waitcnt vmcnt(0)
    s_branch {l}
    {d}:""")
def signal(k, so): k.m(f"buffer_atomic_add v{vS1}, v{vSO}, {SWS}, {so} offen sc1", "sig")
def single(rot=0, ts=0, gf=2):
    k = newk(NAME + "_kernel"); n = k.name
    prologue(k); stamp(k, 0, ts)
    if ts: k("s_memtime s[100:101]")
    side_addr(k); kgen_addr(k); g1_addr(k, rot)
    k(f"""s_or_b32 s66, s2, {sW}
    s_cmp_eq_u32 s66, 0
    s_cselect_b32 s98, 0, {OOB}
    s_cmp_eq_u32 {sW}, 0
    s_cselect_b32 s66, 1, 0
    v_cmp_gt_u32 vcc, s66, v0
    v_mov_b32 v{vS1}, {OOB}
    v_lshlrev_b32 v{vPO}, 8, v0
    v_cndmask_b32 v{vSO}, v{vS1}, 0, vcc
    v_mov_b32 v{vS1}, 1
    v_mov_b32 v{vPE}, 0
    s_mov_b32 s94, 256
    s_mov_b32 s95, 0x20000""")
    srds(k); k("s_mov_b64 s[92:93], s[32:33]")
    k.m(f"buffer_store_dword v{vPE}, v{vPO}, {SWS}, s98 offen sc1", "side")
    side_load(k); kgen_load(k, 0)
    k(f"s_cmp_ge_u32 {sI}, 28\ns_cbranch_scc1 {n}_f0")
    for st in range(3):
        for f in g1_dma(k, st): f()
    side_addr2(k)
    k.wait("side"); vm = list(k.vm)
    k(f"s_mov_b32 {sKD}, {L_KD}\ns_mov_b32 {sCNT}, 1\ns_branch {n}_j0\n{n}_f0:")
    kgen_load(k, 1); kgen_load(k, 2); side_addr2(k); k.wait0(); k.vm = vm
    k(f"s_mov_b32 {sKD}, 0\ns_mov_b32 {sCNT}, 3\n{n}_j0:")
    k.m(f"buffer_store_dword v{vS1}, v{vSO}, {SDB}, s98 offen sc1", "sig")
    stamp(k, 1, ts)
    side_do(k)
    poll_setup(k, 1, 1)
    k(f"s_lshl_b32 s98, {sX}, 8")
    stamp(k, 2, ts)
    def bb2():
        k.wait0(); poll_check(k, SDB, "0")
    def ab2():
        signal(k, "s98")
        k(f"s_mov_b32 s98, {OOB}\ns_cmp_ge_u32 {sI}, 28\ns_cbranch_scc1 {n}_f1")
        for f in g1_dma(k, 3): f()
        k(f"{n}_f1:")
    kloop(k, after_b1=lambda: poll_issue(k, SDB, "0"), before_b2=bb2, after_b2=ab2)
    poll_setup(k, 8, 32)
    wq = w2_prefetch(k)
    stamp(k, 3, ts)
    k(f"s_cmp_ge_u32 {sI}, 28\ns_cbranch_scc1 {n}_f2")
    cnt = [0]
    def fill():
        if cnt[0] == 0: stamp(k, 4, ts); conv_load(k)
        for _ in range(gf if cnt[0] & 1 else 1): wq.pop(0)()
        cnt[0] += 1
    wq0 = list(wq)
    gemm1(k, poll=lambda i: poll_check(k, SWS, "0") if i else poll_issue(k, SWS, "0"), fill=fill)
    vm = list(k.vm)
    k(f"s_lshl_b32 s98, {sRB}, 8\ns_add_u32 s98, s98, 2048\ns_branch {n}_c\n{n}_f2:")
    k.vm = []
    poll_issue(k, SWS, "0"); poll_check(k, SWS, "0")
    k(f"s_barrier\ns_mov_b32 {sKD}, 0\ns_mov_b32 {sCNT}, 2")
    stamp(k, 4, ts)
    conv_load(k)
    k(f"{n}_f3:")
    def nxt():
        k(f"s_add_u32 {sPAIR}, {sPAIR}, 1"); conv_load(k)
    k.vm = ["ul"]
    conv(k, after_b1=nxt)
    k(f"s_add_u32 {sKD}, {sKD}, {KPAIR}\ns_sub_u32 {sCNT}, {sCNT}, 1\ns_cmp_lg_u32 {sCNT}, 0\ns_cbranch_scc1 {n}_f3")
    k.wait("ul")
    for f in wq0[:len(wq0) - len(wq)]: f()
    k.vm = vm
    k(f"{n}_c:")
    stamp(k, 5, ts)
    def cfill():
        if wq: wq.pop(0)()
    def cb2():
        while wq: wq.pop(0)()
        k.wait("hst")
    conv(k, fill=cfill, before_b2=cb2, after_b2=lambda: signal(k, "s98"))
    stamp(k, 6, ts)
    poll_setup(k, 1, 14)
    k(f"s_lshr_b32 s99, {sTK}, 1\ns_lshl_b32 s99, s99, 8\ns_add_u32 s99, s99, 2048\ns_lshl_b32 s98, {sX}, 8\ns_add_u32 s98, s98, {24*256}")
    poll_issue(k, SWS, "s99")
    k.wait0(); k("s_barrier")
    signal(k, "s98")
    stamp(k, 7, ts)
    poll_check(k, SWS, "s99")
    k("s_barrier")
    stamp(k, 8, ts)
    def hook(p):
        if p == (0, 0):
            poll_setup(k, 1, 32); k(f"s_lshl_b32 s99, {sCHT}, 8\ns_add_u32 s99, s99, {24*256}")
        if p == (0, 1): stamp(k, 9, ts)
        if p == (2, 10): poll_issue(k, SWS, "s99")
        if p == "pre_b": stamp(k, 10, ts); poll_check(k, SWS, "s99"); stamp(k, 11, ts)
    gemm2(k, hook)
    if ts:
        stamp(k, 12, ts); k.wait0(); stamp(k, 13, ts)
        k("s_memtime s[96:97]\ns_waitcnt lgkmcnt(0)\ns_sub_u32 s96, s96, s100\nv_writelane_b32 v229, s96, 14")
        k(f"""s_lshl2_add_u32 s66, s2, {sW}
        s_lshl_b32 s66, s66, 6
        s_add_u32 s66, s66, 0x40000
        v_lshlrev_b32 v1, 2, v0
        s_mov_b64 exec, 0xffff
        buffer_store_dword v229, v1, {SWS}, s66 offen
        s_lshl2_add_u32 s66, s2, {sW}
        s_cmp_eq_u32 s66, {4*(ts-1)}
        s_cselect_b32 s66, 4, {OOB}
        buffer_store_dword v229, v1, {SDB}, s66 offen""")
    fin(k)
    return build(HDR + ["; @launch grid=(256,1,1) block=(256,1,1) lds=163840"], [k])
```

```python
from g0 import *
vXO, vWO = 88, 89
sXS, sWS_, sKK, sM0 = "s77", "s78", "s79", "s80"
def g1_addr(k, rot):
    k(f"""v_lshrrev_b32 v90, 3, v0
    v_lshrrev_b32 v91, 4, v0
    s_lshl_b32 s66, {sW}, 2
    v_xor_b32 v92, v0, v91
    v_xor_b32 v92, s66, v92
    v_and_b32 v92, 7, v92
    v_mul_u32_u24 v90, 1280, v90
    v_lshl_add_u32 v{vXO}, v92, 4, v90
    v_lshlrev_b32 v92, 2, v91
    v_xor_b32 v92, v0, v92
    v_and_b32 v92, 15, v92
    v_mul_u32_u24 v91, 3456, v91
    v_lshl_add_u32 v{vWO}, v92, 4, v91
    s_cmp_eq_u32 {sCT}, 13
    s_cselect_b32 s66, 7, 15
    v_cmp_lt_u32 vcc, s66, v92
    v_mov_b32 v90, {OOB}
    s_mul_i32 {sXS}, {sRB}, 163840
    s_mul_i32 s66, {sW}, 10240
    s_add_u32 {sXS}, {sXS}, s66
    s_lshl_b32 {sWS_}, {sCT}, 8
    s_mul_i32 s66, {sW}, 13824
    s_add_u32 {sWS_}, {sWS_}, s66
    s_lshl_b32 {sM0}, {sW}, 10
    v_cndmask_b32 v{vWO}, v{vWO}, v90, vcc""")
    if rot:
        k(f"""s_mul_i32 s66, {sRB}, 3
        s_mul_i32 s67, {sCT}, {rot}
        s_add_u32 s66, s66, s67
        s_mul_i32 s67, s66, 6554
        s_lshr_b32 s67, s67, 16
        s_mul_i32 s67, s67, 10
        s_sub_u32 {sKK}, s66, s67""")
    else: k(f"s_mov_b32 {sKK}, 0")
def g1_dma(k, st):
    buf = (st % 4) * 32768; out = []
    def mk(i):
        def f():
            x = i < 4; j = i & 3
            if i == 0: k(f"s_lshl_b32 s81, {sKK}, 7\ns_add_u32 s81, s81, {sXS}")
            elif i == 4: k(f"s_mul_i32 s81, {sKK}, 221184\ns_add_u32 s81, s81, {sWS_}\ns_add_u32 {sKK}, {sKK}, 1\ns_cmp_eq_u32 {sKK}, 10\ns_cselect_b32 {sKK}, 0, {sKK}")
            k(f"s_add_u32 m0, {sM0}, {buf + (0 if x else 16384) + 4096*j}")
            if j: k(f"s_add_u32 s81, s81, {40960 if x else 55296}")
            k.m(f"buffer_load_dwordx4 v{vXO if x else vWO}, {SU if x else SW1}, s81 offen lds", f"g{st}")
        return f
    return [mk(i) for i in range(8)]
ACC = 96; FR = 16
def gemm1(k, poll=None, fill=None):
    XA, WA = 2, 10
    k(f"""v_and_b32 v48, 31, v0
    v_lshrrev_b32 v49, 5, v0
    v_bfe_u32 v50, v0, 1, 3
    v_xor_b32 v50, v50, v49
    s_and_b32 s66, {sW}, 1
    s_lshl_b32 s66, s66, 13
    v_lshl_add_u32 v51, v48, 7, s66""")
    for ks in range(4):
        k(f"v_xor_b32 v52, {2*ks}, v50\nv_lshl_add_u32 v{XA+ks}, v52, 4, v51\nv_add_u32 v{XA+4+ks}, 0x10000, v{XA+ks}")
    k(f"""v_bfe_u32 v50, v0, 2, 2
    v_lshl_add_u32 v51, v49, 3, v50
    v_lshlrev_b32 v51, 8, v51
    s_and_b32 s66, {sW}, 2
    v_xor_b32 v50, s66, v50
    v_lshl_add_u32 v51, v50, 6, v51
    v_and_b32 v50, 16, v0
    v_lshl_add_u32 v51, v50, 1, v51
    v_and_b32 v50, 3, v0
    v_lshl_add_u32 v51, v50, 3, v51
    v_add_u32 v{WA}, 16384, v51
    v_xor_b32 v{WA+1}, 64, v{WA}
    v_add_u32 v{WA+2}, 0x10000, v{WA}
    v_add_u32 v{WA+3}, 0x10000, v{WA+1}
    v_mov_b32 v14, 0
    v_mov_b32 v15, 0""")
    k(f"""s_lshr_b32 s66, {sW}, 1
    s_lshl1_add_u32 s66, {sCT}, s66
    s_lshl_b32 s67, s66, 7
    v_lshl_add_u32 v50, v48, 1, s67
    v_min_u32 v50, {3456-66}, v50
    s_and_b32 s68, {sW}, 1
    s_lshl1_add_u32 s68, {sRB}, s68
    s_lshl_b32 s82, s68, 11
    s_add_u32 s82, s82, {ST}
    v_lshlrev_b32 v58, 5, v48
    s_mul_i32 s83, s68, {4*55296}
    s_lshl_b32 s67, s66, 11
    s_add_u32 s83, s83, s67
    s_add_u32 s83, s83, {H}
    s_cmp_eq_u32 s66, 27
    s_cselect_b32 s83, {OOB}, s83
    s_add_u32 s84, s83, {2*55296}
    v_bfe_u32 v51, v0, 4, 1
    v_mul_u32_u24 v51, 55296, v51
    v_lshl_add_u32 v51, v49, 8, v51
    v_and_b32 v52, 15, v0
    v_lshl_add_u32 v59, v52, 4, v51""")
    k.m("global_load_ushort v56, v50, s[22:23]", "b1")
    k.m("global_load_ushort v57, v50, s[22:23] offset:64", "b1")
    def reads(g):
        st, ks = divmod(g, 4); up = (st % 4) >> 1; o = (st & 1) * 32768; f = FR + 16 * (g & 1)
        r = []
        for ti in range(2):
            for e in range(2): r.append(f"ds_read_b64_tr_b16 {R(f+4*ti+2*e,2)}, v{WA+2*up+ti} offset:{o + (16*ks+4*e)*256}")
        for tj in range(2): r.insert(2 + 3*tj, f"ds_read_b128 {R(f+8+4*tj,4)}, v{XA+4*up+ks} offset:{o + 4096*tj}")
        return r
    k.wait("g0"); k("s_barrier")
    for r in reads(0): k(r)
    dq = []
    for g in range(40):
        st, ks = divmod(g, 4); f = FR + 16 * (g & 1)
        def mf(ti, tj):
            a = ACC + 16 * (2*ti + tj)
            k(f"v_mfma_f32_32x32x16_bf16 {R(a,16)}, {R(f+4*ti,4)}, {R(f+8+4*tj,4)}, {'0' if g == 0 else R(a,16)}")
        rd = reads(g + 1) if g < 39 and not X.get('nord') else []
        k("s_waitcnt lgkmcnt(0)")
        mf(0, 0)
        if ks == 3 and st < 9:
            k.wait(f"g{st+1}")
            if poll and st == 8: poll(1)
            k("s_barrier")
            if st + 4 < 10 and not X.get('nodma'): dq += g1_dma(k, st + 4)
            if st == 8:
                for tj in range(2):
                    for h in range(2): k.m(f"buffer_load_dwordx4 {R(64+8*tj+4*h,4)}, v58, {SWS}, s82 offen offset:{1024*tj+16*h} {SC}", "st")
        if poll and g == 28: poll(0)
        for r in rd[:3]: k(r)
        mf(1, 0)
        for r in rd[3:]: k(r)
        if dq: dq.pop(0)()
        mf(0, 1)
        for i in range(0 if X.get('nodot') else 4): k(f"v_dot2c_f32_bf16 v14, {sONE}, v{f+i}")
        if dq: dq.pop(0)()
        mf(1, 1)
        for i in range(0 if X.get('nodot') else 4): k(f"v_dot2c_f32_bf16 v15, {sONE}, v{f+4+i}")
    k(f"v_cmp_gt_u32 vcc, 32, v0")
    k.wait("st")
    for ti in range(2):
        a = 16 + 4*ti
        k(f"""v_cvt_pk_bf16_f32 v{a}, v{14+ti}, v{14+ti}
        v_lshl_or_b32 v{a+2}, v{56+ti}, 16, v{56+ti}
        v_and_b32 v{a}, 0xffff0000, v{a}
        v_cndmask_b32 v{a+2}, 0, v{a+2}, vcc
        v_sub_f32 v{a+1}, v{14+ti}, v{a}
        v_mov_b32 v{a+3}, 0
        v_cvt_pk_bf16_f32 v{a}, v{a}, v{a+1}
        v_mov_b32 v{a+1}, v{a}""")
    for ti in range(2):
        for tj in range(2):
            a = ACC + 16 * (2*ti + tj)
            k(f"v_mfma_f32_32x32x16_bf16 {R(a,16)}, {R(16+4*ti,4)}, {R(64+8*tj,4)}, {R(a,16)}")
    n = 0
    for ti in range(2):
        for tj in range(2):
            C = R(68 + 8*tj, 2); S = R(70 + 8*tj, 2)
            for j in range(2):
                a = ACC + 16 * (2*ti + tj) + 8*j; t = 24 + 8 * (n & 1); o = 40 + 4 * (n & 1); n += 1
                P = [(R(a+2*p, 2), R(t+2*p, 2)) for p in range(4)]
                for x, y in P: k(f"v_pk_mul_f32 {y}, {x}, {x}")
                for x, y in P: k(f"v_pk_fma_f32 {y}, {y}, {C}, {C} op_sel:[0,1,0] op_sel_hi:[1,1,0]")
                for x, y in P: k(f"v_pk_mul_f32 {y}, {y}, {x}")
                if fill: fill()
                for i in range(8): k(f"v_exp_f32 v{t+i}, v{t+i}")
                for x, y in P: k(f"v_pk_fma_f32 {y}, {y}, {S}, {S} op_sel_hi:[1,0,0]")
                if fill: fill()
                for i in range(8): k(f"v_rcp_f32 v{t+i}, v{t+i}")
                for x, y in P: k(f"v_pk_mul_f32 {y}, {y}, {x}")
                for p in range(4): k(f"v_cvt_pk_bf16_f32 v{o+p}, v{t+2*p}, v{t+2*p+1}")
                k.m(f"buffer_store_dwordx4 {R(o,4)}, v59, {SWS}, {'s84' if tj else 's83'} offen offset:{1024*ti+512*j} {SC}", "hst")

L_U = 131072 + KPAIR; UCH = 4608; L_X = 98304
vUL = 80
def conv_load(k):
    k(f"""s_lshl2_add_u32 s66, {sPAIR}, {sW}
    s_lshl_b32 s66, s66, 11
    s_add_u32 s66, s66, {UT}
    v_lshlrev_b32 v1, 4, v0""")
    for j in range(2): k.m(f"buffer_load_dwordx4 {R(vUL+4*j,4)}, v1, {SWS}, s66 offen offset:{1024*j} {SC}", "ul")
def conv(k, fill=None, after_b1=None, before_b2=None, after_b2=None):
    CA = 16; FB = 96
    k(f"""v_bfe_u32 v2, v0, 2, 1
    v_mul_u32_u24 v2, {UCH}, v2
    v_lshrrev_b32 v3, 3, v0
    v_lshl_add_u32 v2, v3, 6, v2
    v_and_b32 v3, 3, v0
    v_lshl_add_u32 v2, v3, 4, v2
    s_lshl_b32 s66, {sW}, 10
    s_add_u32 s66, s66, {L_U + 512}
    v_add_u32 v2, s66, v2
    s_lshr_b32 s68, {sW}, 1
    s_and_b32 s69, {sW}, 1
    s_mul_i32 s66, s68, {UCH}
    s_add_u32 s66, s66, {L_U}
    s_lshl_b32 s70, s69, 8
    s_add_u32 s67, s66, s70
    v_lshl_add_u32 v3, v0, 2, s67
    v_mov_b32 v4, 0
    ds_write_b32 v3, v4
    s_sub_u32 s66, s66, s70
    s_add_u32 s66, s66, {480-192}
    v_and_b32 v5, 15, v0
    v_lshrrev_b32 v6, 4, v0
    v_lshl_add_u32 v8, v5, 5, s66
    v_lshl_add_u32 v8, v6, 4, v8
    s_mul_i32 s66, s68, {KCH}
    s_add_u32 s66, s66, {sKD}
    s_sub_u32 s66, s66, s70
    s_add_u32 s66, s66, {4064 + KCOPY - 512 - 192}
    v_and_b32 v7, 1, v0
    v_mul_u32_u24 v7, {KCOPY + 4}, v7
    v_and_b32 v9, 14, v0
    v_lshl_add_u32 v7, v9, 1, v7
    v_sub_u32 v7, s66, v7
    v_lshl_add_u32 v9, v6, 4, v7
    v_subrev_u32 v10, 1024, v9
    v_subrev_u32 v11, 2048, v9
    v_subrev_u32 v12, 3072, v9""")
    k.wait("ul")
    k(f"""ds_write_b128 v2, {R(vUL,4)}
    ds_write_b128 v2, {R(vUL+4,4)} offset:512
    v_lshlrev_b32 v13, 6, v5
    v_lshl_add_u32 v13, v6, 4, v13
    s_lshl2_add_u32 s71, {sPAIR}, {sW}
    s_lshl_b32 s71, s71, 11
    s_add_u32 s71, s71, {AT}
    s_lshl_b32 s66, {sW}, 12
    s_add_u32 s66, s66, {L_X}
    v_lshl_add_u32 v14, v0, 4, s66
    v_xor_b32 v15, 4096, v14
    s_waitcnt lgkmcnt(0)
    s_barrier""")
    if after_b1: after_b1()
    def reads(i):
        f = FB + 64 * (i & 1); r = []
        for s in range(8):
            r.append(f"ds_read_b128 {R(f+32+4*s,4)}, v8 offset:{512*s + 64*(3-i)}")
            o = 128 * (1 - (s & 1)) + 16 * (3 - i)
            r.append(f"ds_read2_b32 {R(f+4*s,2)}, v{9+(s>>1)} offset0:{o} offset1:{o+1}")
            r.append(f"ds_read2_b32 {R(f+4*s+2,2)}, v{9+(s>>1)} offset0:{o+2} offset1:{o+3}")
        return r
    for r in reads(0): k(r)
    order = [(s, t) for s in range(8) for t in range(s, 8)]
    order.remove((7, 7)); order.insert(9, (7, 7))
    for i in range(4):
        f = FB + 64 * (i & 1); rd = reads(i + 1) if i < 3 else []
        k("s_waitcnt lgkmcnt(0)")
        for n, (s, t) in enumerate(order):
            a = R(CA + 4*t, 4)
            k(f"v_mfma_f32_16x16x32_bf16 {a}, {R(f+4*s,4)}, {R(f+32+4*(t-s),4)}, {'0' if i == 0 and s == 0 else a}")
            if rd: k(rd.pop(0))
            if fill and n % 3 == 2: fill()
    lj = k.label("cx")
    k(f"s_cmp_eq_u32 s69, 0\ns_nop 6\ns_cbranch_scc1 {lj}")
    for i in range(16): k(f"v_swap_b32 v{CA+i}, v{CA+16+i}")
    k(f"{lj}:")
    for t in range(4): k(f"ds_write_b128 v14, {R(CA+16+4*t,4)} offset:{1024*t}")
    if before_b2: before_b2()
    k("s_waitcnt lgkmcnt(0)\ns_barrier")
    for t in range(4): k(f"ds_read_b128 {R(CA+16+4*t,4)}, v15 offset:{1024*t}")
    if after_b2: after_b2()
    for tp in range(2):
        k(f"s_waitcnt lgkmcnt({2-2*tp})")
        for p in range(4): k(f"v_pk_add_f32 {R(CA+8*tp+2*p,2)}, {R(CA+8*tp+2*p,2)}, {R(CA+16+8*tp+2*p,2)}")
        for p in range(4): k(f"v_cvt_pk_bf16_f32 v{48+4*tp+p}, v{CA+8*tp+2*p}, v{CA+8*tp+2*p+1}")
        k.m(f"buffer_store_dwordx4 {R(48+4*tp,4)}, v13, {SWS}, s71 offen offset:{1024*tp} {SC}", "ast")

vL16, vL16X = 230, 231
def wfrag(i): return R(4*i, 4, "a") if i < 64 else R(232 + 4*(i - 64), 4)
def w2_prefetch(k):
    k(f"""v_lshlrev_b32 v{vL16}, 4, v0
    s_cmp_ge_u32 {sW}, 2
    s_cselect_b32 s66, {OOB}, 0
    v_add_u32 v{vL16X}, s66, v{vL16}
    s_mul_i32 s85, {sCHT}, 54
    s_add_u32 s85, s85, {sW}
    s_mul_i32 s85, s85, 5120
    s_add_u32 s85, s85, {W2P}""")
    def mk(i):
        def f():
            s, c = divmod(i, 5)
            if X.get('now2'): return
            if c == 4: k("s_add_u32 s85, s85, 4096")
            k.m(f"buffer_load_dwordx4 {wfrag(i)}, v{vL16X if s == 13 else vL16}, {SWS}, s85 offen offset:{1024*(c&3)} {SC}", "w2p")
            if c == 4: k(f"s_add_u32 s85, s85, {20480-4096}")
        return f
    return [mk(i) for i in range(70)]
RING = 56
def OST(): return ['', 'sc1', 'nt', 'sc0 sc1'][X.get('ost', 0)]
def gemm2(k, hook=None):
    hook = hook or (lambda n: None)
    def hload(j, s):
        if s == 0:
            k(f"""s_add_u32 s66, {sW}, {1+j}
            s_and_b32 s66, s66, 3
            s_lshl2_add_u32 s66, {sTK}, s66
            s_mul_i32 s66, s66, 54
            s_add_u32 s66, s66, {sW}
            s_lshl_b32 s86, s66, 10
            s_add_u32 s86, s86, {H}""")
        else: k("s_add_u32 s86, s86, 4096")
        k.m(f"buffer_load_dwordx4 {R(RING + 56*(j%3) + 4*s, 4)}, v{vL16X if s == 13 else vL16}, {SWS}, s86 offen {SC}", f"h{j}_{s}")
    for j in range(3):
        for s in range(14): hload(j, s)
    k(f"""v_and_b32 v2, 15, v0
    v_lshrrev_b32 v47, 4, v0
    v_lshlrev_b32 v48, 4, v47
    v_lshlrev_b32 v49, 3, v47
    s_mul_i32 s67, {sCHT}, 160
    v_add_u32 v52, s67, v48
    v_add_u32 v53, s67, v49
    s_lshl2_add_u32 s68, {sTK}, {sW}
    s_lshl_b32 s66, s68, 9
    s_add_u32 s66, s66, {ST}
    v_lshlrev_b32 v1, 5, v2""")
    k.m(f"buffer_load_dword v1, v1, {SWS}, s66 offen offset:28 {SC}", "b2")
    k(f"""v_mul_u32_u24 v45, 1280, v2
    v_add_u32 v46, v45, v53
    v_add_u32 v45, v45, v52
    s_mul_i32 s87, s68, 20480
    v_lshl_add_u32 v44, v2, 12, v48
    v_and_b32 v3, 12, v0
    v_lshl_add_u32 v3, v3, 12, v44
    s_mul_i32 s88, {sCHT}, {80*4096}
    s_lshr_b32 s66, {sTK}, 3
    s_lshl_b32 s66, s66, 10
    s_add_u32 s88, s88, s66
    s_and_b32 s66, s68, 15
    s_lshl_b32 s66, s66, 6
    s_add_u32 s88, s88, s66
    s_add_u32 s88, s88, {AT}
    v_lshrrev_b32 v48, 2, v2
    v_cmp_eq_u32 vcc, v48, v47
    v_and_b32 v48, 1, v0
    v_lshlrev_b32 v48, 4, v48
    v_mov_b32 v49, 0x3f80
    v_lshlrev_b32 v48, v48, v49
    v_cndmask_b32 v47, 0, v48, vcc
    s_bfe_u32 s66, {sTK}, 0x10002
    s_lshl_b32 s66, s66, 1
    v_bfe_u32 v2, v0, 1, 1
    v_add_u32 v2, s66, v2""")
    for i in range(4): k(f"v_cmp_eq_u32 vcc, {i}, v2\nv_cndmask_b32 v{48+i}, 0, v47, vcc")
    B2 = RING + 56; AF = RING + 68; P = [RING + 88, RING + 108, RING + 128]; BB = RING + 148
    pend = []
    for j in range(4):
        acc = 4 + 20 * (j & 1)
        for s in range(14):
            hook((j, s))
            k.wait(f"h{j}_{s}")
            for c in range(5):
                a = R(acc + 4*c, 4)
                k(f"v_mfma_f32_16x16x32_bf16 {a}, {wfrag(5*s+c)}, {R(RING + 56*(j%3) + 4*s, 4)}, {'0' if s == 0 else a}")
                if pend and s >= 1:
                    for _ in range(2):
                        if pend: k(pend.pop(0))
            if j == 0 and s >= 1: hload(3, s - 1)
            if j == 1 and s == 0: hload(3, 13)
            if j == 2 and s == 0:
                k.m(f"global_load_dwordx4 {R(B2,4)}, v52, s[26:27]", "b2")
                k.m(f"global_load_dwordx4 {R(B2+4,4)}, v52, s[26:27] offset:64", "b2")
                k.m(f"global_load_dwordx2 {R(B2+8,2)}, v53, s[26:27] offset:128", "b2")
            if j == 3 and s == 2:
                k.wait("b2", "lgkmcnt(0)")
                hook("pre_b")
                k("s_barrier")
                for c in range(5):
                    if c in (1, 3): k("s_add_u32 s88, s88, 16384")
                    if c in (2, 4): k(f"s_add_u32 s88, s88, {131072-16384}")
                    k.m(f"buffer_load_dwordx4 {R(AF+4*c,4)}, v{44 if c == 4 else 3}, {SWS}, s88 offen {SC}", "a")
                pend.append(f"s_mul_i32 s66, {sW}, 15360\nv_add_u32 v2, s66, v{vL16}")
                for jj in range(3):
                    for c in range(5): pend.append(f"ds_read_b128 {R(P[jj]+4*c,4)}, v2 offset:{5120*jj+1024*c}")
                for i in range(10): pend += [f"v_lshlrev_b32 v{BB+2*i}, 16, v{B2+i}", f"v_and_b32 v{BB+2*i+1}, 0xffff0000, v{B2+i}"]
                pend.append("s_waitcnt lgkmcnt(0)")
                for jj in range(3):
                    for i in range(20): pend.append(f"v_add_f32 v{BB+i}, v{BB+i}, v{P[jj]+i}")
        if j < 3:
            pend.append(f"s_add_u32 s66, {sW}, {1+j}\ns_and_b32 s66, s66, 3\ns_mul_i32 s66, s66, 15360\nv_add_u32 v2, s66, v{vL16}")
            for c in range(5): pend.append(f"ds_write_b128 v2, {R(acc+4*c,4)} offset:{5120*j+1024*c}")
    while pend: k(pend.pop(0))
    k.wait("a")
    for c in range(5): k(f"v_mfma_f32_16x16x32_bf16 {R(4+4*c,4)}, {R(AF+4*c,4)}, v[48:51], 0")
    for i in range(10): k(f"v_pk_add_f32 {R(24+2*i,2)}, {R(24+2*i,2)}, {R(BB+2*i,2)}")
    for i in range(10): k(f"v_pk_add_f32 {R(4+2*i,2)}, {R(4+2*i,2)}, {R(24+2*i,2)} neg_lo:[0,1] neg_hi:[0,1]")
    for i in range(10):
        k(f"v_pk_fma_f32 {R(4+2*i,2)}, {R(4+2*i,2)}, v[0:1], {R(24+2*i,2)} op_sel:[0,1,0] op_sel_hi:[1,1,1]")
        k(f"v_cvt_pk_bf16_f32 v{B2+i}, v{4+2*i}, v{5+2*i}")
        if i == 3: k.m(f"buffer_store_dwordx4 {R(B2,4)}, v45, {SOUT}, s87 offen {OST()}")
        if i == 7: k.m(f"buffer_store_dwordx4 {R(B2+4,4)}, v45, {SOUT}, s87 offen offset:64 {OST()}")
    k.m(f"buffer_store_dwordx2 {R(B2+8,2)}, v46, {SOUT}, s87 offen offset:128 {OST()}")
```

```python
from gen import *
SDB = "s[92:95]"
vPO, vPE, vPG, vSO, vS1 = 224, 225, 226, 227, 228
def stamp(k, n, on):
    if on: k(f"s_memrealtime s[96:97]\ns_waitcnt lgkmcnt(0)\nv_writelane_b32 v229, s96, {n}")
def poll_setup(k, nl, target):
    k(f"""s_cmp_eq_u32 {sW}, 0
    s_cselect_b32 s89, {nl}, 0
    v_cmp_gt_u32 s[90:91], s89, v0
    v_lshlrev_b32 v{vPO}, 8, v0
    v_mov_b32 v{vPE}, {OOB}
    v_cndmask_b32 v{vPO}, v{vPE}, v{vPO}, s[90:91]
    v_cndmask_b32 v{vPE}, 0, {target}, s[90:91]""")
def poll_issue(k, srd, so): k.m(f"buffer_load_dword v{vPG}, v{vPO}, {srd}, {so} offen sc1", "poll")
def poll_check(k, srd, so):
    l, d = k.label("sp"), k.label("sd")
    k.wait("poll")
    k(f"""s_mov_b32 s89, 0x20000
    {l}:
    v_cmp_ne_u32 s[90:91], v{vPE}, v{vPG}
    s_sub_u32 s89, s89, 1
    s_cselect_b64 s[90:91], 0, s[90:91]
    s_cmp_eq_u64 s[90:91], 0
    s_cbranch_scc1 {d}
    buffer_load_dword v{vPG}, v{vPO}, {srd}, {so} offen sc1
    s_waitcnt vmcnt(0)
    s_branch {l}
    {d}:""")
def signal(k, so): k.m(f"buffer_atomic_add v{vS1}, v{vSO}, {SWS}, {so} offen sc1", "sig")
def single(rot=0, ts=0, gf=2, a0=0, a1=0, pf=1):
    k = newk(NAME + "_kernel"); n = k.name
    if ts: k("s_memrealtime s[98:99]")
    prologue(k, pf); stamp(k, 15, ts)
    if ts: k("v_writelane_b32 v229, s98, 0")
    if ts: k("s_memtime s[100:101]")
    side_addr(k); kgen_addr(k); g1_addr(k, rot)
    k(f"""s_or_b32 s66, s2, {sW}
    s_cmp_eq_u32 s66, 0
    s_cselect_b32 s98, 0, {OOB}
    s_cmp_eq_u32 {sW}, 0
    s_cselect_b32 s66, 1, 0
    v_cmp_gt_u32 vcc, s66, v0
    v_mov_b32 v{vS1}, {OOB}
    v_lshlrev_b32 v{vPO}, 8, v0
    v_cndmask_b32 v{vSO}, v{vS1}, 0, vcc
    v_mov_b32 v{vS1}, 1
    v_mov_b32 v{vPE}, 0
    s_mov_b32 s94, 256
    s_mov_b32 s95, 0x20000""")
    srds(k); k("s_mov_b64 s[92:93], s[32:33]")
    k.m(f"buffer_store_dword v{vPE}, v{vPO}, {SWS}, s98 offen sc1", "side")
    side_load(k); kgen_load(k, 0)
    k(f"s_cmp_ge_u32 {sI}, 28\ns_cbranch_scc1 {n}_f0")
    for st in range(3):
        for f in g1_dma(k, st): f()
    side_addr2(k)
    k.wait("side"); vm = list(k.vm)
    k(f"s_mov_b32 {sKD}, {L_KD}\ns_mov_b32 {sCNT}, 1\ns_branch {n}_j0\n{n}_f0:")
    kgen_load(k, 1); kgen_load(k, 2); side_addr2(k); k.wait0(); k.vm = vm
    k(f"s_mov_b32 {sKD}, 0\ns_mov_b32 {sCNT}, 3\n{n}_j0:")
    k.m(f"buffer_store_dword v{vS1}, v{vSO}, {SDB}, s98 offen sc1", "sig")
    stamp(k, 1, ts)
    side_do(k)
    poll_setup(k, 1, 1)
    k(f"s_lshl_b32 s98, {sX}, 8")
    stamp(k, 2, ts)
    def bb2():
        k.wait0(); poll_check(k, SDB, "0")
    def ab2():
        signal(k, "s98")
        k(f"s_mov_b32 s98, {OOB}\ns_cmp_ge_u32 {sI}, 28\ns_cbranch_scc1 {n}_f1")
        for f in g1_dma(k, 3): f()
        k(f"{n}_f1:")
    kloop(k, after_b1=lambda: poll_issue(k, SDB, "0"), before_b2=bb2, after_b2=ab2)
    poll_setup(k, 8, 32)
    wq = w2_prefetch(k)
    stamp(k, 3, ts)
    k(f"s_cmp_ge_u32 {sI}, 28\ns_cbranch_scc1 {n}_f2")
    cnt = [0]
    def fill():
        if cnt[0] == 0: stamp(k, 4, ts); conv_load(k)
        for _ in range(gf if cnt[0] & 1 else 1): wq.pop(0)()
        cnt[0] += 1
    wq0 = list(wq)
    gemm1(k, poll=lambda i: poll_check(k, SWS, "0") if i else poll_issue(k, SWS, "0"), fill=fill)
    vm = list(k.vm)
    k(f"s_lshl_b32 s98, {sRB}, 8\ns_add_u32 s98, s98, 2048\ns_branch {n}_c\n{n}_f2:")
    k.vm = []
    poll_issue(k, SWS, "0"); poll_check(k, SWS, "0")
    k(f"s_barrier\ns_mov_b32 {sKD}, 0\ns_mov_b32 {sCNT}, 2")
    stamp(k, 4, ts)
    conv_load(k)
    k(f"{n}_f3:")
    def nxt():
        k(f"s_add_u32 {sPAIR}, {sPAIR}, 1"); conv_load(k)
    k.vm = ["ul"]
    conv(k, after_b1=nxt)
    k(f"s_add_u32 {sKD}, {sKD}, {KPAIR}\ns_sub_u32 {sCNT}, {sCNT}, 1\ns_cmp_lg_u32 {sCNT}, 0\ns_cbranch_scc1 {n}_f3")
    k.wait("ul")
    for f in wq0[:len(wq0) - len(wq)]: f()
    k.vm = vm
    k(f"{n}_c:")
    stamp(k, 5, ts)
    def cfill():
        if wq: wq.pop(0)()
    def cb2():
        while wq: wq.pop(0)()
        k.wait("hst")
    conv(k, fill=cfill, before_b2=cb2, after_b2=lambda: signal(k, "s98"))
    stamp(k, 6, ts)
    poll_setup(k, 1, 14)
    k(f"s_lshr_b32 s99, {sTK}, 1\ns_lshl_b32 s99, s99, 8\ns_add_u32 s99, s99, 2048\ns_lshl_b32 s98, {sX}, 8\ns_add_u32 s98, s98, {24*256}")
    poll_issue(k, SWS, "s99")
    k.wait0(); k("s_barrier")
    signal(k, "s98")
    stamp(k, 7, ts)
    poll_check(k, SWS, "s99")
    k("s_barrier")
    stamp(k, 8, ts)
    def hook(p):
        if p == (0, 0):
            poll_setup(k, 1, 32); k(f"s_lshl_b32 s99, {sCHT}, 8\ns_add_u32 s99, s99, {24*256}")
        if p == (0, 1): stamp(k, 9, ts)
        if p == (2, 10): poll_issue(k, SWS, "s99")
        if p == "pre_b": stamp(k, 10, ts); poll_check(k, SWS, "s99"); stamp(k, 11, ts)
    gemm2(k, hook)
    if ts:
        stamp(k, 12, ts); k.wait0(); stamp(k, 13, ts)
        k("s_memtime s[96:97]\ns_waitcnt lgkmcnt(0)\ns_sub_u32 s96, s96, s100\nv_writelane_b32 v229, s96, 14")
        k(f"""s_lshl2_add_u32 s66, s2, {sW}
        s_lshl_b32 s66, s66, 6
        s_add_u32 s66, s66, 0x40000
        v_lshlrev_b32 v1, 2, v0
        s_mov_b64 exec, 0xffff
        buffer_store_dword v229, v1, {SWS}, s66 offen
        s_lshl2_add_u32 s66, s2, {sW}
        s_cmp_eq_u32 s66, {4*(ts-1)}
        s_cselect_b32 s66, 4, {OOB}
        buffer_store_dword v229, v1, {SDB}, s66 offen""")
    if a1:
        k(f"""v_readlane_b32 s66, v229, {a0}
        v_readlane_b32 s67, v229, {a1}
        v_readlane_b32 s68, v229, 13
        s_sub_u32 s66, s67, s66
        s_min_u32 s66, s66, 5000
        s_lshl_b32 s66, s66, 3
        {n}_amp:
        s_memrealtime s[96:97]
        s_waitcnt lgkmcnt(0)
        s_sub_u32 s96, s96, s68
        s_cmp_lt_u32 s96, s66
        s_cbranch_scc1 {n}_amp""")
    fin(k)
    return build(HDR + ["; @launch grid=(256,1,1) block=(256,1,1) lds=163840"], [k])
```

```python
from asmlib import K
import struct
def R(a, n=1, t="v"): return f"{t}{a}" if n == 1 else f"{t}[{a}:{a+n-1}]"
def F(x): return hex(struct.unpack("<I", struct.pack("<f", x))[0])
CNT = 0; ST = 0x10000; UT = 0x100000; AT = 0x400000; W2P = 0x700000; H = 0xA00000; WSN = 0x1100000
OOB = 0x40000000
SU, SW1, SWS, SW2, SOUT = "s[36:39]", "s[40:43]", "s[44:47]", "s[48:51]", "s[52:55]"
sW, sX, sI, sRB, sCT, sPAIR, sTK, sCHT = "s3", "s56", "s57", "s58", "s59", "s60", "s61", "s62"
sONE = "s63"
sKD = "s64"
sCNT = "s65"
SC = "sc1"
L_SU, L_SW = 131072, 131072 + 12288
L_TAB = 65536; TROW = 528; TCH = 62 * TROW
L_KD = 131072; KCOPY = 4160; KCH = 2 * KCOPY; KPAIR = 2 * KCH
X = {}
class G(K):
    def __init__(s, *a, **kw):
        super().__init__(*a, **kw); s.vm = []
    def m(s, txt, tag=None):
        s(txt); s.vm.append(tag)
    def wait(s, tag, extra=""):
        if tag not in s.vm: return
        idx = max(i for i, t in enumerate(s.vm) if t == tag)
        n = sum(1 for t in s.vm[idx+1:] if not (t or "").startswith("~"))
        assert n <= 63, n
        s(f"s_waitcnt vmcnt({n}) {extra}".strip())
    def wait0(s): s("s_waitcnt vmcnt(0)"); s.vm = []

import re
class Rec:
    def __init__(s, k, remap=0, hi=64):
        s.k = k; s.q = []; s.name = k.name; s.remap = remap; s.hi = hi
    def _r(s, t):
        if not s.remap: return t
        f = lambda n: n + s.remap if 0 < n < s.hi else n
        t = re.sub(r"\bv\[(\d+):(\d+)\]", lambda m: f"v[{f(int(m[1]))}:{f(int(m[2]))}]", t)
        return re.sub(r"\bv(\d+)\b", lambda m: f"v{f(int(m[1]))}", t)
    def __call__(s, txt):
        for l in s._r(txt).strip("\n").split("\n"):
            l = l.strip(); f = (lambda l=l: s.k(l))
            if l.startswith("s_") and s.q: s.q[-1].append(f)
            else: s.q.append([f])
    def m(s, txt, tag=None): s.q.append([lambda t=s._r(txt): s.k.m(t, tag)])
    def wait(s, tag, extra=""): s.q.append([lambda: s.k.wait(tag, extra)])
    def do(s, f): s.q.append([f])
    def label(s, b): return s.k.label(b)
    def pop(s, n=1):
        for _ in range(n):
            if s.q:
                for f in s.q.pop(0): f()
    def flush(s): s.pop(len(s.q))
def prologue(k, prefetch=True, w8=0):
    k(f"""s_cmp_ge_u32 s2, 256
    s_cbranch_scc1 {k.name}_end
    s_load_dwordx16 s[4:19], s[0:1], 0
    s_load_dwordx16 s[20:35], s[0:1], 64""")
    if prefetch:
        k(f"""s_getpc_b64 s[66:67]
        {k.name}_pc:
        v_lshlrev_b32 v1, 7, v0
        v_min_u32 v1, {k.name}_end-{k.name}_pc, v1""")
        k.m(f"global_load_dword v{247 if w8 else 255}, v1, s[66:67]", "pf")
    k(f"""v_lshrrev_b32 v1, 6, v0
    v_and_b32 v0, 63, v0
    v_readfirstlane_b32 {'s101' if w8 else sW}, v1
    s_and_b32 {sX}, s2, 7
    s_lshr_b32 {sI}, s2, 3
    s_mul_i32 s66, {sI}, 37
    s_lshr_b32 s66, s66, 8
    s_mul_i32 s67, s66, 7
    s_sub_u32 s67, {sI}, s67
    s_lshr_b32 {sRB}, {sX}, 1
    s_lshl2_add_u32 {sRB}, {sRB}, s66
    s_and_b32 {sCT}, {sX}, 1
    s_mul_i32 {sCT}, {sCT}, 7
    s_add_u32 {sCT}, {sCT}, s67
    s_mul_i32 s66, {sI}, 3
    s_sub_u32 s66, s66, 56
    s_max_i32 s66, s66, {sI}
    s_mul_i32 {sPAIR}, {sX}, 40
    s_add_u32 {sPAIR}, {sPAIR}, s66
    s_lshr_b32 {sTK}, {sI}, 3
    s_lshl2_add_u32 {sTK}, {sX}, {sTK}
    s_and_b32 {sCHT}, {sI}, 7
    s_mov_b32 {sONE}, 0x3f803f80
    s_mov_b32 s38, 2621440
    s_mov_b32 s39, 0x20000
    s_mov_b32 s42, 2211840
    s_mov_b32 s43, 0x20000
    s_mov_b32 s46, {WSN}
    s_mov_b32 s47, 0x20000
    s_mov_b32 s50, 2211840
    s_mov_b32 s51, 0x20000
    s_mov_b32 s54, 2621440
    s_mov_b32 s55, 0x20000""")
    if w8: k(f"s_and_b32 {sW}, s101, 3\ns_lshr_b32 s100, s101, 2")
def srds(k):
    k("""s_waitcnt lgkmcnt(0)
    s_mov_b64 s[36:37], s[4:5]
    s_mov_b64 s[40:41], s[20:21]
    s_mov_b64 s[44:45], s[34:35]
    s_mov_b64 s[48:49], s[24:25]
    s_mov_b64 s[52:53], s[30:31]""")

def side_addr(k):
    k(f"s_lshl_b32 s66, {sW}, 6\nv_add_u32 v1, s66, v0")
    for j in range(3):
        k(f"""v_mul_u32_u24 v12, 6554, v1
        v_mul_u32_u24 v13, 3277, v1
        v_lshrrev_b32 v12, 16, v12
        v_lshrrev_b32 v13, 16, v13
        v_mul_u32_u24 v12, 1120, v12
        v_mul_u32_u24 v13, 960, v13
        v_lshl_add_u32 v{2+j}, v1, 4, v12
        v_lshl_add_u32 v{5+j}, v1, 4, v13""")
        if j < 2: k("v_add_u32 v1, 256, v1")
    k(f"""v_and_b32 v1, 31, v0
    v_lshlrev_b32 v10, 4, v1
    v_lshlrev_b32 v11, 3, v1
    v_lshrrev_b32 v12, 5, v0
    v_mul_u32_u24 v12, 1280, v12
    v_add_u32 v8, v12, v10
    v_add_u32 v9, v12, v11
    s_mul_i32 s68, {sTK}, 81920
    s_mul_i32 s66, {sCHT}, 160
    s_add_u32 s68, s68, s66
    s_lshr_b32 s66, s2, 2
    s_mul_i32 s70, s66, 40960
    s_and_b32 s66, s2, 3
    s_mul_i32 s66, s66, 320
    s_add_u32 s70, s70, s66
    s_cmp_ge_u32 {sW}, 2
    s_cselect_b32 s69, {OOB}, s68
    s_cselect_b32 s71, {OOB}, s70
    s_lshl_b32 s72, {sX}, 5
    s_add_u32 s72, s72, {sI}
    s_lshl2_add_u32 s72, s72, {sW}
    s_mul_i32 s72, s72, 2560
    s_lshl_b32 s73, {sW}, 10""")
def side_load(k):
    for j in range(3):
        k(f"s_add_u32 m0, s73, {L_SU + 4096*j}")
        k.m(f"buffer_load_dwordx4 v{2+j}, {SU}, {'s69' if j == 2 else 's68'} offen lds", "side")
    for j in range(3):
        k(f"s_add_u32 m0, s73, {L_SW + 4096*j}")
        k.m(f"buffer_load_dwordx4 v{5+j}, {SW2}, {'s71' if j == 2 else 's70'} offen lds", "side")
    k.m(f"buffer_load_dwordx4 v[16:19], v8, {SU}, s72 offen", "side")
    k.m(f"buffer_load_dwordx4 v[20:23], v8, {SU}, s72 offen offset:512", "side")
    k.m(f"buffer_load_dwordx2 v[24:25], v9, {SU}, s72 offen offset:1024", "side")
    k.m(f"global_load_dwordx4 v[28:31], v10, s[28:29]", "side")
    k.m(f"global_load_dwordx4 v[32:35], v10, s[28:29] offset:512", "side")
    k.m(f"global_load_dwordx2 v[36:37], v11, s[28:29] offset:1024", "side")
def side_addr2(k):
    k(f"""v_lshrrev_b32 v8, 4, v0
    v_bfe_u32 v9, v0, 2, 2
    v_and_b32 v10, 3, v0
    v_lshl_add_u32 v11, v8, 3, v9
    v_mul_u32_u24 v11, 160, v11
    v_lshl_add_u32 v11, v10, 3, v11
    s_and_b32 s66, {sW}, 1
    s_mul_i32 s67, s66, 5120
    s_lshr_b32 s74, {sW}, 1
    s_lshl_b32 s75, s74, 5
    s_add_u32 s67, s67, s75
    s_add_u32 s67, s67, {L_SU}
    v_add_u32 v2, s67, v11
    v_lshrrev_b32 v11, 5, v0
    v_lshl_add_u32 v11, v11, 4, v9
    v_and_b32 v12, 16, v0
    v_lshrrev_b32 v12, 2, v12
    v_add_u32 v11, v11, v12
    v_mul_u32_u24 v11, 320, v11
    s_lshl_b32 s67, s74, 6
    s_lshl3_add_u32 s67, s66, s67
    s_add_u32 s67, s67, {L_SW}
    v_lshl_add_u32 v3, v10, 4, v11
    v_add_u32 v3, s67, v3
    s_mul_i32 s67, s66, 160
    s_add_u32 s67, s67, {L_SW + 128}
    v_lshl_add_u32 v4, v10, 3, v11
    v_add_u32 v4, s67, v4
    v_bfe_u32 v9, v0, 1, 3
    v_lshlrev_b32 v9, 13, v9
    v_lshl_add_u32 v9, v8, 4, v9
    v_and_b32 v10, 1, v0
    v_lshl_add_u32 v5, v10, 6, v9
    v_lshlrev_b32 v6, 4, v0
    v_and_b32 v7, 32, v0
    v_and_b32 v8, 31, v0
    v_cmp_eq_u32 vcc, 16, v8
    v_mov_b32 v8, {OOB}
    v_cndmask_b32 v7, v8, v7, vcc
    s_mul_i32 s68, {sCHT}, 5
    s_add_u32 s68, s68, s74
    s_lshl_b32 s68, s68, 16
    s_lshl1_add_u32 s67, {sTK}, s66
    s_lshl_b32 s67, s67, 7
    s_add_u32 s68, s68, s67
    s_add_u32 s68, s68, {UT}
    s_add_u32 s69, s68, 131072
    s_add_u32 s70, s68, 262144
    s_and_b32 s67, s2, 3
    s_mul_i32 s67, s67, 108
    s_lshr_b32 s71, s2, 2
    s_add_u32 s67, s67, s71
    s_mul_i32 s67, s67, 5120
    s_add_u32 s67, s67, {W2P}
    s_cmp_ge_u32 s2, 216
    s_cselect_b32 s67, {OOB}, s67
    s_add_u32 s71, s67, s73
    s_add_u32 s72, s71, {54*5120}
    s_mul_i32 s75, s66, {54*5120}
    s_add_u32 s75, s75, s67
    s_add_u32 s75, s75, 4096
    s_cmp_ge_u32 {sW}, 2
    s_cselect_b32 s70, {OOB}, s70
    s_cselect_b32 s75, {OOB}, s75
    s_lshl_b32 s76, {sX}, 5
    s_add_u32 s76, s76, {sI}
    s_lshl2_add_u32 s76, s76, {sW}
    s_lshl_b32 s76, s76, 6
    s_add_u32 s76, s76, {ST}""")
def side_do(k):
    for j in range(3):
        for e in range(2): k(f"ds_read_b64_tr_b16 {R(40+4*j+2*e,2)}, v2 offset:{64*j + 640*e}")
    for j in range(3):
        for e in range(2): k(f"ds_read_b64_tr_b16 {R(52+4*j+2*e,2)}, {'v4' if j == 2 else 'v3'} offset:{(160 if j == 1 else 0) + 2560*e}")
    for i in range(10):
        c = ("0", "0", "0") if i == 0 else ("v12", "v13", "v14")
        k(f"""v_dot2_f32_bf16 v12, v{16+i}, {sONE}, {c[0]}
        v_dot2_f32_bf16 v13, v{16+i}, v{16+i}, {c[1]}
        v_dot2_f32_bf16 v14, v{16+i}, v{28+i}, {c[2]}""")
        if i == 2: k("s_waitcnt lgkmcnt(0)")
        if 2 <= i < 8: k.m(f"buffer_store_dwordx4 {R(32+4*i,4)}, v{5 if i < 5 else 6}, {SWS}, {('s68', 's69', 's70', 's71', 's72', 's75')[i-2]} offen {SC}", "sst")
    for sh in (8, 4, 2, 1):
        for r in (12, 13, 14): k(f"v_add_f32 v{r}, v{r}, v{r} row_ror:{sh}")
    for r in (12, 13, 14): k(f"v_add_f32 v{r}, v{r}, v{r} row_bcast:15 row_mask:0xa")
    c0 = -2 * 0.7978845608028654 * 1.4426950408889634
    k(f"""v_mul_f32 v12, {F(-1/640)}, v12
    v_mul_f32 v13, {F(1/640)}, v13
    v_mul_f32 v14, {F(-1.4426950408889634)}, v14
    v_fma_f32 v13, -v12, v12, v13
    v_exp_f32 v14, v14
    v_max_f32 v13, 0, v13
    v_add_f32 v13, {F(1e-5)}, v13
    v_cvt_pk_bf16_f32 v16, v12, v12
    v_rsq_f32 v15, v13
    v_sqrt_f32 v22, v13
    v_add_f32 v14, 1.0, v14
    v_and_b32 v17, 0xffff0000, v16
    v_rcp_f32 v23, v14
    v_sub_f32 v17, v12, v17
    v_cvt_pk_bf16_f32 v18, v22, v22
    v_cvt_pk_bf16_f32 v17, v17, v17
    v_and_b32 v18, 0xffff0000, v18
    v_sub_f32 v19, v22, v18
    v_cvt_pk_bf16_f32 v18, v18, v19
    v_mov_b32 v19, 0
    v_mul_f32 v20, {F(c0)}, v15
    v_mul_f32 v21, v15, v15
    v_mul_f32 v21, {F(0.044715)}, v21
    v_mul_f32 v21, v20, v21""")
    k.m(f"buffer_store_dwordx4 v[16:19], v7, {SWS}, s76 offen {SC}", "sst")
    k.m(f"buffer_store_dwordx4 v[20:23], v7, {SWS}, s76 offen offset:16 {SC}", "sst")

KP = 88
def kgen_addr(k):
    k(f"""s_lshl2_add_u32 s66, {sPAIR}, {sW}
    s_lshl_b32 s67, s66, 7
    v_lshl_add_u32 v60, v0, 1, s67
    s_and_b32 s66, s66, -2
    v_mov_b32 v61, s66""")
def kgen_load(k, j, dst=KP):
    for i, p in enumerate((6, 8, 10, 12)):
        k.m(f"global_load_ushort v{dst+i}, v60, s[{p}:{p+1}] offset:{512*j}", "kp")
    for i, p in enumerate((14, 16)):
        k.m(f"global_load_ushort v{dst+4+i}, v61, s[{p}:{p+1}] offset:{4*j}", "kp")
def cmul(k, d, x, e, t):
    k(f"""v_pk_mul_f32 {R(t,2)}, {R(x,2)}, {R(e,2)} op_sel:[0,0] op_sel_hi:[1,0]
    v_pk_fma_f32 {R(d,2)}, {R(x,2)}, {R(e,2)}, {R(t,2)} op_sel:[1,1,0] op_sel_hi:[0,1,1] neg_lo:[1,0,0]""")
def kgen(k, before_b1=None, after_b1=None, fill=None):
    fill = fill or (lambda: None)
    L2E = 1.4426950408889634
    hi = struct.unpack("<f", struct.pack("<f", L2E))[0]; lo = L2E - hi
    lar, aim, cr, ci, ldt, dsk = range(KP, KP + 6)
    for r in range(KP, KP + 6): k(f"v_lshlrev_b32 v{r}, 16, v{r}")
    k(f"s_mov_b32 s66, {F(hi)}")
    for r, t in ((lar, 2), (ldt, 4)):
        k(f"""v_mul_f32 v{t}, s66, v{r}
        v_fma_f32 v{t+1}, v{r}, s66, -v{t}
        v_exp_f32 v{t}, v{t}
        v_fmac_f32 v{t+1}, {F(lo)}, v{r}
        v_mul_f32 v{t+1}, {F(0.6931471805599453)}, v{t+1}
        v_fmac_f32 v{t}, v{t}, v{t+1}
        v_cvt_pk_bf16_f32 v{t}, v{t}, v{t}
        v_and_b32 v{r}, 0xffff0000, v{t}""")
    E1, E8, E256, T, A0 = 8, 10, 12, 6, 16
    k(f"""v_mul_f32 v2, v{lar}, v{ldt}
    v_mul_f32 v3, v{aim}, v{ldt}
    v_mul_f32 v2, {F(-L2E)}, v2
    v_mul_f32 v3, 0.15915494, v3
    v_add_f32 v{ldt}, v{ldt}, v{ldt}
    v_mul_f32 v{A0}, v{cr}, v{ldt}
    v_mul_f32 v{A0+1}, v{ci}, v{ldt}""")
    for e, p in ((E1, 1.0), (E8, 8.0), (E256, 256.0)):
        k(f"""v_mul_f32 v5, {F(p)}, v3
        v_mul_f32 v4, {F(p)}, v2
        v_fract_f32 v5, v5
        v_exp_f32 v4, v4
        v_cos_f32 v{e}, v5
        v_sin_f32 v{e+1}, v5
        s_nop 0
        v_pk_mul_f32 {R(e,2)}, {R(e,2)}, v[4:5] op_sel_hi:[1,0]""")
        fill()
    k(f"""s_lshr_b32 s66, {sW}, 1
    s_mul_i32 s66, s66, {TCH}
    s_add_u32 s66, s66, {L_TAB}
    s_and_b32 s67, {sW}, 1
    s_lshl_b32 s67, s67, 8
    s_add_u32 s67, s67, s66
    v_lshl_add_u32 v2, v0, 2, s67
    v_mov_b32 v5, 0x3f80
    ds_write_b32 v2, v5 offset:{30*TROW}""")
    def row(hh, s):
        rho = 8 * (s >> 2) + 4 * hh + (s & 3)
        return rho - (rho > 27)
    tmp = [40]
    def put(x, rows, neg):
        t = tmp[0]; tmp[0] = 40 + (t - 39) % 8
        k(f"v_cvt_pk_bf16_f32 v{t}, v{x}, {'-' if neg else ''}v{x+1}")
        for r in rows: k(f"ds_write_b32 v2, v{t} offset:{r*TROW}")
        if t % 4 == 0: fill()
    for j in range(9):
        if j: cmul(k, A0 + 2*j, A0 + 2*j - 2, E1, T)
        put(A0 + 2*j, [row(hh, j - 4*hh) for hh in (0, 1) if 0 <= j - 4*hh <= 4], 1)
    for j in range(5):
        cmul(k, A0 + 4*j, A0 + 4*j, E256, T)
        put(A0 + 4*j, [row(hh, 5 + j - 2*hh) for hh in (0, 1) if 0 <= j - 2*hh <= 2], 1)
    for hh in (0, 1):
        for j in range(3):
            cmul(k, A0 + 8*j, A0 + 8*j, E256, T); put(A0 + 8*j, [row(hh, 8 + j)], 1)
    for q in range(4):
        for j in range(2):
            cmul(k, A0 + 16*j, A0 + 16*j, E256, T); put(A0 + 16*j, [row(q & 1, 11 + 2*(q >> 1) + j)], 1)
    for b in range(1, 32):
        if b > 1: cmul(k, 14, E8 if b == 2 else 14, E8, T)
        put(E8 if b == 1 else 14, [30 + b], 0)
    k(f"""v_and_b32 v5, 31, v0
    v_lshrrev_b32 v6, 5, v0
    v_mul_u32_u24 v4, {TROW}, v5
    v_lshl_add_u32 v4, v6, 4, v4
    v_add_u32 v4, s66, v4
    v_cmp_lt_u32 vcc, 27, v5
    v_subrev_u32 v3, {TROW}, v4
    v_cndmask_b32 v3, v4, v3, vcc""")
    if before_b1: before_b1()
    k("s_waitcnt lgkmcnt(0)\ns_barrier")
    if after_b1: after_b1()
    FA = 96
    fa = lambda j: FA + 8 * (j % 7)
    for j in range(16):
        k(f"ds_read_b128 {R(fa(j),4)}, v3 offset:{32*j}\nds_read_b128 {R(fa(j)+4,4)}, v4 offset:{30*TROW+32*j}")
        if j >= 4:
            k(f"s_waitcnt lgkmcnt(8)")
            jj = j - 4
            k(f"v_mfma_f32_32x32x16_bf16 v[16:31], {R(fa(jj),4)}, {R(fa(jj)+4,4)}, {'0' if jj == 0 else 'v[16:31]'}")
            if jj & 1: fill()
    k(f"""s_mul_i32 s66, {sW}, {KCOPY}
    s_add_u32 s66, s66, {sKD}
    v_lshlrev_b32 v5, 4, v5
    v_sub_u32 v5, s66, v5
    v_lshlrev_b32 v7, 3, v6
    v_sub_u32 v2, v5, v7
    v_lshlrev_b32 v7, 9, v6
    v_sub_u32 v3, v5, v7
    v_and_b32 v4, 7, v0
    v_lshl_add_u32 v4, v4, 2, s66
    v_cmp_eq_u32 vcc, 0, v0
    v_and_b32 v7, 1, v0
    v_cndmask_b32 v{dsk}, 0, v{dsk}, vcc
    v_cmp_eq_u32 s[68:69], 1, v7
    v_add_u32 v2, {4088-512}, v2
    v_add_u32 v3, {4080-3072}, v3""")
    for jj in range(12, 16):
        k(f"s_waitcnt lgkmcnt({2*(15-jj)})")
        k(f"v_mfma_f32_32x32x16_bf16 v[16:31], {R(fa(jj),4)}, {R(fa(jj)+4,4)}, v[16:31]")
    a = list(range(16, 21)); b = [21, 22, 23]; c = [24, 25, 26]; d = [[27, 28, 32], [29, 30, 33]]
    k(f"""s_bitcmp1_b32 {sW}, 0
    s_nop 7
    v_add_f32 v16, v16, v{dsk}
    v_cndmask_b32 v32, v27, v28, s[68:69]
    v_cndmask_b32 v33, v29, v30, s[68:69]
    v_mov_b32 v34, 0""")
    le, lj = k.label("ke"), k.label("kj")
    k(f"s_cbranch_scc1 {le}")
    def pk(dst, prs):
        for i, (x, y) in enumerate(prs): k(f"v_cvt_pk_bf16_f32 v{dst+i}, v{x}, v{y}")
    pk(36, [(a[3], a[2]), (a[1], a[0]), (b[2], b[1]), (b[0], b[0])])
    pk(40, [(c[2], c[2]), (c[1], c[1]), (c[1], c[0]), (c[0], c[0])])
    for i, (d0, d1, x) in enumerate(d): pk(44 + 4*i, [(d1, d1), (d1, x), (d0, d0), (d0, d0)])
    k(f"s_branch {lj}\n{le}:")
    pk(36, [(a[4], a[3]), (a[2], a[1]), (b[2], b[2]), (b[1], b[0])])
    pk(40, [(c[2], c[2]), (c[2], c[1]), (c[1], c[1]), (c[0], c[0])])
    for i, (d0, d1, x) in enumerate(d): pk(44 + 4*i, [(d1, d1), (d1, d1), (x, d0), (d0, d0)])
    k(f"""v_cvt_pk_bf16_f32 v34, v16, v34
    v_cndmask_b32 v34, 0, v34, vcc
    {lj}:
    ds_write_b64 v2, v[36:37] offset:512
    ds_write_b64 v2, v[38:39]
    ds_write_b128 v3, v[40:43] offset:2048
    ds_write_b128 v3, v[44:47] offset:1024
    ds_write_b128 v3, v[48:51]
    s_mov_b64 exec, 0xff
    ds_write_b32 v4, v34 offset:4096
    s_mov_b64 exec, -1""")
```

```python
from g0 import *
vXO, vWO = 88, 92
sXS, sWS_, sM0 = "s77", "s78", "s80"
def g1_addr(k):
    k(f"""v_lshrrev_b32 v2, 3, v0
    v_lshrrev_b32 v3, 4, v0
    v_xor_b32 v4, v0, v3
    v_and_b32 v4, 7, v4
    v_mul_u32_u24 v2, 1280, v2
    v_lshl_add_u32 v{vXO}, v4, 4, v2
    v_xor_b32 v{vXO+1}, 64, v{vXO}
    v_add_u32 v{vXO+2}, {2*9216}, v{vXO}
    v_add_u32 v{vXO+3}, {3*9216}, v{vXO+1}
    v_add_u32 v{vXO+1}, 9216, v{vXO+1}
    v_lshlrev_b32 v4, 2, v3
    v_xor_b32 v4, v0, v4
    v_and_b32 v4, 15, v4
    v_mul_u32_u24 v3, 3456, v3
    v_lshl_add_u32 v{vWO}, v4, 4, v3
    s_cmp_eq_u32 {sCT}, 13
    s_cselect_b32 s66, 7, 15
    v_cmp_lt_u32 vcc, s66, v4
    v_mov_b32 v2, {OOB}
    s_lshl2_add_u32 s66, {sRB}, {sW}
    s_mul_i32 {sXS}, s66, 40960
    s_lshl_b32 {sWS_}, {sCT}, 8
    s_mul_i32 s66, {sW}, 55296
    s_add_u32 {sWS_}, {sWS_}, s66
    s_lshl_b32 {sM0}, {sW}, 12
    v_cndmask_b32 v{vWO}, v{vWO}, v2, vcc""")
    for j in range(1, 4): k(f"v_add_u32 v{vWO+j}, {j*12800}, v{vWO}")
def g1_dma(k, st):
    buf = (st % 4) * 32768
    def mk(i):
        def f():
            x = i < 4; j = i & 3; so = sXS if x else sWS_
            if j == 0:
                k(f"s_add_u32 m0, {sM0}, {buf + (0 if x else 16384)}")
                if st: k(f"s_add_u32 {so}, {so}, {128 if x else 221184}")
            k.m(f"buffer_load_dwordx4 v{(vXO if x else vWO)+j}, {SU if x else SW1}, {so} offen offset:{1024*j} lds", f"g{st}")
        return f
    return [mk(i) for i in range(8)]
GT = 160; ACC = 96; FR = 16
XA, WA = 2, 10
L_CS = 163840 - 1024
def gemm1_setup(k):
    k(f"""v_and_b32 v48, 31, v0
    v_lshrrev_b32 v49, 5, v0
    v_bfe_u32 v50, v0, 1, 3
    v_xor_b32 v50, v50, v49
    s_and_b32 s66, {sW}, 1
    s_lshl_b32 s66, s66, 13
    v_lshl_add_u32 v51, v48, 7, s66""")
    for ks in range(4):
        k(f"v_xor_b32 v52, {2*ks}, v50\nv_lshl_add_u32 v{XA+ks}, v52, 4, v51\nv_add_u32 v{XA+4+ks}, 0x10000, v{XA+ks}")
    k(f"""v_bfe_u32 v50, v0, 2, 2
    v_lshl_add_u32 v51, v49, 3, v50
    v_lshlrev_b32 v51, 8, v51
    s_and_b32 s66, {sW}, 2
    v_xor_b32 v50, s66, v50
    v_lshl_add_u32 v51, v50, 6, v51
    v_and_b32 v50, 16, v0
    v_lshl_add_u32 v51, v50, 1, v51
    v_and_b32 v50, 3, v0
    v_lshl_add_u32 v51, v50, 3, v51
    v_add_u32 v{WA}, 16384, v51
    v_xor_b32 v{WA+1}, 64, v{WA}
    v_add_u32 v{WA+2}, 0x10000, v{WA}
    v_add_u32 v{WA+3}, 0x10000, v{WA+1}
    s_and_b32 s66, {sW}, 1
    s_lshl_b32 s66, s66, 6
    v_xor_b32 v{WA}, s66, v{WA}
    v_xor_b32 v{WA+1}, s66, v{WA+1}
    v_xor_b32 v{WA+2}, s66, v{WA+2}
    v_xor_b32 v{WA+3}, s66, v{WA+3}""")
def gemm1_sel(k):
    k(f"""v_and_b32 v52, 31, v0
    v_cmp_eq_u32 vcc, 0, v52
    v_cmp_eq_u32 s[66:67], 20, v52
    v_mov_b32 v52, {sONE}
    s_or_b64 vcc, vcc, s[66:67]
    v_cndmask_b32 v48, 0, v52, vcc
    v_cndmask_b32 v49, 0, v52, vcc
    v_cndmask_b32 v50, 0, v52, vcc
    v_cndmask_b32 v51, 0, v52, vcc""")
def gemm1_setup2(k):
    k(f"""v_and_b32 v58, 31, v0
    s_lshr_b32 s66, {sW}, 1
    s_lshl1_add_u32 s66, {sCT}, s66
    s_min_u32 s67, s66, 26
    s_lshl_b32 s67, s67, 7
    s_and_b32 s81, {sW}, 1
    s_lshl_b32 s79, s81, 6
    s_add_u32 s67, s67, s79
    v_lshl_add_u32 v14, v58, 1, s67
    v_xor_b32 v15, 64, v14""")
    k.m("global_load_ushort v56, v14, s[22:23]", "b1")
    k.m("global_load_ushort v57, v15, s[22:23]", "b1")
    k(f"""v_lshlrev_b32 v58, 5, v58
    s_lshl_b32 s79, s81, 10
    s_lshl1_add_u32 s81, {sRB}, s81
    s_lshl_b32 s82, s81, 11
    s_add_u32 s82, s82, {ST}
    s_mul_i32 s83, s81, {4*55296}
    s_lshl_b32 s67, s66, 11
    s_add_u32 s83, s83, s67
    s_add_u32 s83, s83, {H}
    s_cmp_eq_u32 s66, 27
    s_cselect_b32 s83, {OOB}, s83
    s_add_u32 s84, s83, {2*55296}
    v_bfe_u32 v59, v0, 4, 1
    v_mul_u32_u24 v59, 55296, v59
    v_lshrrev_b32 v62, 5, v0
    v_lshl_add_u32 v59, v62, 8, v59
    v_and_b32 v62, 15, v0
    v_lshl_add_u32 v59, v62, 4, v59
    v_add_u32 v59, s79, v59
    v_xor_b32 v62, 1024, v59
    s_lshl_b32 s66, {sW}, 8
    s_add_u32 s66, s66, {L_CS}
    v_lshl_add_u32 v14, v0, 2, s66
    v_xor_b32 v15, 256, v14""")
def stats_load(k):
    for tj in range(2):
        for h in range(2): k.m(f"buffer_load_dwordx4 {R(64+8*tj+4*h,4)}, v58, {SWS}, s82 offen offset:{1024*tj+16*h} {SC}", "st")
def gemm1(k, pre_b, post_b, fill, dma=True):
    def reads(g):
        st, ks = divmod(g, 4); up = (st % 4) >> 1; o = (st & 1) * 32768; f = FR + 16 * (g & 1)
        r = []
        for ti in range(2):
            for e in range(2): r.append(f"ds_read_b64_tr_b16 {R(f+4*ti+2*e,2)}, v{WA+2*up+ti} offset:{o + (16*ks+4*e)*256}")
        for tj in range(2): r.insert(2 + 3*tj, f"ds_read_b128 {R(f+8+4*tj,4)}, v{XA+4*up+ks} offset:{o + 4096*tj}")
        return r
    k.wait("g0"); k("s_barrier")
    for r in reads(0): k(r)
    dq = []
    for g in range(40):
        st, ks = divmod(g, 4); f = FR + 16 * (g & 1)
        def mf(ti, tj):
            a = ACC + 16 * (2*ti + tj)
            k(f"v_mfma_f32_32x32x16_bf16 {R(a,16)}, {R(f+4*ti,4)}, {R(f+8+4*tj,4)}, {'0' if g == 0 else R(a,16)}")
        rd = reads(g + 1) if g < 39 else []
        k("s_waitcnt lgkmcnt(0)")
        if not X.get("nocs"): k(f"v_mfma_f32_16x16x32_bf16 v[52:55], v[48:51], {R(f,4)}, {'0' if g == 0 else 'v[52:55]'}")
        mf(0, 0)
        if ks == 3 and st < 9:
            k.wait(f"g{st+1}")
            pre_b(st)
            k("s_barrier")
            if dma and st + 4 < 10: dq += g1_dma(k, st + 4)
            post_b(st)
        for r in rd[:3]: k(r)
        fill(g, 0)
        mf(1, 0)
        for r in rd[3:]: k(r)
        if dq: dq.pop(0)()
        fill(g, 1)
        mf(0, 1)
        fill(g, 2)
        if g == 39: k("v_cmp_gt_u32 vcc, 32, v0\nds_write_b32 v14, v52")
        mf(1, 1)
        if dq: dq.pop(0)()
        fill(g, 3)
    k("s_waitcnt lgkmcnt(0)\ns_barrier\nds_read_b32 v53, v15")
    k.wait("st")
    for ti in range(2):
        a = 16 + 4*ti
        if ti: k("s_waitcnt lgkmcnt(0)")
        k(f"""v_cvt_pk_bf16_f32 v{a}, v{52+ti}, v{52+ti}
        v_lshl_or_b32 v{a+2}, v{56+ti}, 16, v{56+ti}
        v_and_b32 v{a}, 0xffff0000, v{a}
        v_cndmask_b32 v{a+2}, 0, v{a+2}, vcc
        v_sub_f32 v{a+1}, v{52+ti}, v{a}
        v_mov_b32 v{a+3}, 0
        v_cvt_pk_bf16_f32 v{a}, v{a}, v{a+1}
        v_mov_b32 v{a+1}, v{a}""")
        for tj in range(2):
            c = ACC + 16 * (2*ti + tj)
            k(f"v_mfma_f32_32x32x16_bf16 {R(c,16)}, {R(a,4)}, {R(64+8*tj,4)}, {R(c,16)}")
def unpk(L):
    o = []
    for t in L:
        if t.startswith("v_pk_"): o += [re.sub(r"v\[(\d+):(\d+)\]", lambda m: "v" + m[1+h], t.replace("v_pk_", "v_")) for h in (0, 1)]
        else: o.append(t)
    return o
def gelu(k, fill):
    def grp(n):
        ti, tj, j = n >> 2, (n >> 1) & 1, n & 1
        C = R(68 + 8*tj, 2); S = R(70 + 8*tj, 2)
        a = ACC + 8*n; t = GT + 8 * (n % 3); o = 40 + 4 * (n & 1)
        P = [(R(a+2*p, 2), R(t+2*p, 2)) for p in range(4)]
        K0, K1, S = (R(2 + 6*tj + 2*i, 2) for i in range(3))
        A = [f"v_pk_mul_f32 {y}, {x}, {x}" for x, y in P] + [f"v_pk_fma_f32 {y}, {y}, {K1}, {K0}" for x, y in P] + [f"v_pk_mul_f32 {y}, {y}, {x}" for x, y in P]
        B = [f"v_exp_f32 v{t+i}, v{t+i}" for i in range(8)]
        Cc = [f"v_pk_fma_f32 {y}, {y}, {S}, {S}" for x, y in P]
        D = [f"v_rcp_f32 v{t+i}, v{t+i}" for i in range(8)]
        E = [f"v_pk_mul_f32 {y}, {y}, {x}" for x, y in P] + [f"v_cvt_pk_bf16_f32 v{o+p}, v{t+2*p}, v{t+2*p+1}" for p in range(4)]
        stt = lambda: k.m(f"buffer_store_dwordx4 {R(o,4)}, v{62 if ti else 59}, {SWS}, {'s84' if tj else 's83'} offen offset:{512*j} {SC}", "hst")
        if X.get("unpk", 0) >> n & 1: A, Cc, E = unpk(A), unpk(Cc), unpk(E)
        return A, B, Cc, D, E, stt
    Gs = [grp(n) for n in range(8)]
    def mix(T, V):
        if X.get("nomix"):
            for x in T + V: k(x)
            return
        for i, t in enumerate(T):
            k(t)
            for v in V[i*len(V)//len(T):(i+1)*len(V)//len(T)]: k(v)
    for x in Gs[0][0]: k(x)
    for n in range(8):
        nA = Gs[n+1][0] if n < 7 else []
        mix(Gs[n][1], (Gs[n-1][4] if n else []) + nA[:2])
        if n: Gs[n-1][5]()
        for x in Gs[n][2]: k(x)
        fill(n)
        mix(Gs[n][3], nA[2:])
    for x in Gs[7][4]: k(x)
    Gs[7][5]()

L_U = 131072 + KPAIR; UCH = 4608; L_X = 40960
vUL = 80
def conv_load(k):
    k(f"""s_lshl2_add_u32 s66, {sPAIR}, {sW}
    s_lshl_b32 s66, s66, 11
    s_add_u32 s66, s66, {UT}
    v_lshlrev_b32 v1, 4, v0""")
    for j in range(2): k.m(f"buffer_load_dwordx4 {R(vUL+4*j,4)}, v1, {SWS}, s66 offen offset:{1024*j} {SC}", "ul")
def conv(k, fill=None, after_b1=None, before_b2=None, after_b2=None, pre_i=None, before_b1=None):
    CA = 16; FB = 96
    k(f"""v_bfe_u32 v2, v0, 2, 1
    v_mul_u32_u24 v2, {UCH}, v2
    v_lshrrev_b32 v3, 3, v0
    v_lshl_add_u32 v2, v3, 6, v2
    v_and_b32 v3, 3, v0
    v_lshl_add_u32 v2, v3, 4, v2
    s_lshl_b32 s66, {sW}, 10
    s_add_u32 s66, s66, {L_U + 512}
    v_add_u32 v2, s66, v2
    s_lshr_b32 s68, {sW}, 1
    s_and_b32 s69, {sW}, 1
    s_mul_i32 s66, s68, {UCH}
    s_add_u32 s66, s66, {L_U}
    s_lshl_b32 s70, s69, 8
    s_add_u32 s67, s66, s70
    v_lshl_add_u32 v3, v0, 2, s67
    v_mov_b32 v4, 0
    ds_write_b32 v3, v4
    s_sub_u32 s66, s66, s70
    s_add_u32 s66, s66, {480-192}
    v_and_b32 v5, 15, v0
    v_lshrrev_b32 v6, 4, v0
    v_lshl_add_u32 v8, v5, 5, s66
    v_lshl_add_u32 v8, v6, 4, v8
    s_mul_i32 s66, s68, {KCH}
    s_add_u32 s66, s66, {sKD}
    s_sub_u32 s66, s66, s70
    s_add_u32 s66, s66, {4064 + KCOPY - 512 - 192}
    v_and_b32 v7, 1, v0
    v_mul_u32_u24 v7, {KCOPY + 4}, v7
    v_and_b32 v9, 14, v0
    v_lshl_add_u32 v7, v9, 1, v7
    v_sub_u32 v7, s66, v7
    v_lshl_add_u32 v9, v6, 4, v7
    v_subrev_u32 v10, 1024, v9
    v_subrev_u32 v11, 2048, v9
    v_subrev_u32 v12, 3072, v9""")
    k.wait("ul")
    k(f"""ds_write_b128 v2, {R(vUL,4)}
    ds_write_b128 v2, {R(vUL+4,4)} offset:512
    v_lshlrev_b32 v13, 6, v5
    v_lshl_add_u32 v13, v6, 4, v13
    s_lshl2_add_u32 s71, {sPAIR}, {sW}
    s_lshl_b32 s71, s71, 11
    s_add_u32 s71, s71, {AT}
    s_lshl_b32 s66, {sW}, 12
    s_add_u32 s66, s66, {L_X}
    v_lshl_add_u32 v14, v0, 4, s66
    v_xor_b32 v15, 4096, v14""")
    if before_b1: before_b1()
    k("s_waitcnt lgkmcnt(0)\ns_barrier")
    if after_b1: after_b1()
    def reads(i):
        f = FB + 64 * (i & 1); r = []
        for s in range(8):
            r.append(f"ds_read_b128 {R(f+32+4*s,4)}, v8 offset:{512*s + 64*(3-i)}")
            o = 128 * (1 - (s & 1)) + 16 * (3 - i)
            r.append(f"ds_read2_b32 {R(f+4*s,2)}, v{9+(s>>1)} offset0:{o} offset1:{o+1}")
            r.append(f"ds_read2_b32 {R(f+4*s+2,2)}, v{9+(s>>1)} offset0:{o+2} offset1:{o+3}")
        return r
    for r in reads(0): k(r)
    order = [(s, t) for s in range(8) for t in range(s, 8)]
    order.remove((7, 7)); order.insert(9, (7, 7))
    for i in range(4):
        f = FB + 64 * (i & 1); rd = reads(i + 1) if i < 3 else []
        k("s_waitcnt lgkmcnt(0)")
        if pre_i: pre_i(i)
        for n, (s, t) in enumerate(order):
            a = R(CA + 4*t, 4)
            k(f"v_mfma_f32_16x16x32_bf16 {a}, {R(f+4*s,4)}, {R(f+32+4*(t-s),4)}, {'0' if i == 0 and s == 0 else a}")
            if rd: k(rd.pop(0))
            if fill: fill(i, n)
    lj = k.label("cx")
    k(f"s_cmp_eq_u32 s69, 0\ns_nop 6\ns_cbranch_scc1 {lj}")
    for i in range(16): k(f"v_swap_b32 v{CA+i}, v{CA+16+i}")
    k(f"{lj}:")
    for t in range(4): k(f"ds_write_b128 v14, {R(CA+16+4*t,4)} offset:{1024*t}")
    if before_b2: before_b2()
    k("s_waitcnt lgkmcnt(0)\ns_barrier")
    for t in range(4): k(f"ds_read_b128 {R(CA+16+4*t,4)}, v15 offset:{1024*t}")
    if after_b2: after_b2()
    for tp in range(2):
        k(f"s_waitcnt lgkmcnt({2-2*tp})")
        for p in range(4): k(f"v_pk_add_f32 {R(CA+8*tp+2*p,2)}, {R(CA+8*tp+2*p,2)}, {R(CA+16+8*tp+2*p,2)}")
        for p in range(4): k(f"v_cvt_pk_bf16_f32 v{48+4*tp+p}, v{CA+8*tp+2*p}, v{CA+8*tp+2*p+1}")
        k.m(f"buffer_store_dwordx4 {R(48+4*tp,4)}, v13, {SWS}, s71 offen offset:{1024*tp} {SC}", "ast")

vL16, vL16X = 230, 231
def wfrag(i): return R(4*i, 4, "a") if i < 64 else R(232 + 4*(i - 64), 4)
def w2_prefetch(r, k):
    r(f"""v_lshlrev_b32 v{vL16}, 4, v0
    s_cmp_ge_u32 {sW}, 2
    s_cselect_b32 s66, {OOB}, 0
    v_add_u32 v{vL16X}, s66, v{vL16}
    s_mul_i32 s85, {sCHT}, 54
    s_add_u32 s85, s85, {sW}
    s_mul_i32 s85, s85, 5120
    s_add_u32 s85, s85, {W2P}""")
    def mk(i):
        def f():
            s, c = divmod(i, 5)
            if X.get('now2'): return
            if c == 4: k("s_add_u32 s85, s85, 4096")
            k.m(f"buffer_load_dwordx4 {wfrag(i)}, v{vL16X if s == 13 else vL16}, {SWS}, s85 offen offset:{1024*(c&3)} {SC}", "w2p")
            if c == 4: k(f"s_add_u32 s85, s85, {20480-4096}")
        return f
    return [mk(i) for i in range(70)]
RING = 56
def OST(): return ['', 'sc1', 'nt', 'sc0 sc1'][X.get('ost', 0)]
def h_loads(k):
    def mk(i):
        def f():
            j, s = divmod(i, 14)
            if s == 0:
                k(f"""s_add_u32 s86, {sW}, {1+j}
                s_and_b32 s86, s86, 3
                s_lshl2_add_u32 s86, {sTK}, s86
                s_mul_i32 s86, s86, 54
                s_add_u32 s86, s86, {sW}
                s_lshl_b32 s86, s86, 10
                s_add_u32 s86, s86, {H}""")
            else: k("s_add_u32 s86, s86, 4096")
            k.m(f"buffer_load_dwordx4 {R(RING + 56*(j%3) + 4*s, 4)}, v{vL16X if s == 13 else vL16}, {SWS}, s86 offen {SC}", f"h{j}_{s}")
        return f
    return [mk(i) for i in range(56)]
B2 = RING + 56; AF = RING + 68; P = [RING + 88, RING + 108, RING + 128]; BB = RING + 148
def a_loads(k):
    def mk(c):
        def f():
            if c in (1, 3): k("s_add_u32 s88, s88, 16384")
            if c in (2, 4): k(f"s_add_u32 s88, s88, {131072-16384}")
            k.m(f"buffer_load_dwordx4 {R(AF+4*c,4)}, v{44 if c == 4 else 3}, {SWS}, s88 offen {SC}", "a")
        return f
    return [mk(c) for c in range(5)]
def gemm2_setup(k):
    k(f"""v_and_b32 v2, 15, v0
    v_lshrrev_b32 v47, 4, v0
    v_lshlrev_b32 v48, 4, v47
    v_lshlrev_b32 v49, 3, v47
    s_mul_i32 s67, {sCHT}, 160
    v_add_u32 v52, s67, v48
    v_add_u32 v53, s67, v49
    s_lshl2_add_u32 s68, {sTK}, {sW}
    s_lshl_b32 s66, s68, 9
    s_add_u32 s66, s66, {ST}
    v_lshlrev_b32 v1, 5, v2""")
    k.m(f"buffer_load_dword v1, v1, {SWS}, s66 offen offset:28 {SC}", "b2")
    k(f"""v_mul_u32_u24 v45, 1280, v2
    v_add_u32 v46, v45, v53
    v_add_u32 v45, v45, v52
    s_mul_i32 s87, s68, 20480
    v_lshl_add_u32 v44, v2, 12, v48
    v_and_b32 v3, 12, v0
    v_lshl_add_u32 v3, v3, 12, v44
    s_mul_i32 s88, {sCHT}, {80*4096}
    s_lshr_b32 s66, {sTK}, 3
    s_lshl_b32 s66, s66, 10
    s_add_u32 s88, s88, s66
    s_and_b32 s66, s68, 15
    s_lshl_b32 s66, s66, 6
    s_add_u32 s88, s88, s66
    s_add_u32 s88, s88, {AT}
    v_lshrrev_b32 v48, 2, v2
    v_cmp_eq_u32 vcc, v48, v47
    v_and_b32 v48, 1, v0
    v_lshlrev_b32 v48, 4, v48
    v_mov_b32 v49, 0x3f80
    v_lshlrev_b32 v48, v48, v49
    v_cndmask_b32 v47, 0, v48, vcc
    s_bfe_u32 s66, {sTK}, 0x10002
    s_lshl_b32 s66, s66, 1
    v_bfe_u32 v2, v0, 1, 1
    v_add_u32 v2, s66, v2""")
    for i in range(4): k(f"v_cmp_eq_u32 vcc, {i}, v2\nv_cndmask_b32 v{48+i}, 0, v47, vcc")
def gemm2(k, hq, hook):
    pend = []
    for j in range(4):
        acc = 4 + 20 * (j & 1)
        for s in range(14):
            hook((j, s))
            k.wait(f"h{j}_{s}")
            for c in range(5):
                a = R(acc + 4*c, 4)
                k(f"v_mfma_f32_16x16x32_bf16 {a}, {wfrag(5*s+c)}, {R(RING + 56*(j%3) + 4*s, 4)}, {'0' if s == 0 else a}")
                if pend and s >= 1:
                    for _ in range(2):
                        if pend: k(pend.pop(0))
                if c == 1 and hq: hq.pop(0)()
            if j == 2 and s == 0:
                k.m(f"global_load_dwordx4 {R(B2,4)}, v52, s[26:27]", "b2")
                k.m(f"global_load_dwordx4 {R(B2+4,4)}, v52, s[26:27] offset:64", "b2")
                k.m(f"global_load_dwordx2 {R(B2+8,2)}, v53, s[26:27] offset:128", "b2")
            if j == 3 and s == 2:
                k.wait("b2", "lgkmcnt(0)")
                k("s_barrier")
                pend.append(f"s_mul_i32 s66, {sW}, 15360\nv_add_u32 v2, s66, v{vL16}")
                for jj in range(3):
                    for c in range(5): pend.append(f"ds_read_b128 {R(P[jj]+4*c,4)}, v2 offset:{5120*jj+1024*c}")
                for i in range(10): pend += [f"v_lshlrev_b32 v{BB+2*i}, 16, v{B2+i}", f"v_and_b32 v{BB+2*i+1}, 0xffff0000, v{B2+i}"]
                pend.append("s_waitcnt lgkmcnt(0)")
                for jj in range(3):
                    for i in range(20): pend.append(f"v_add_f32 v{BB+i}, v{BB+i}, v{P[jj]+i}")
        if j < 3:
            pend.append(f"s_add_u32 s66, {sW}, {1+j}\ns_and_b32 s66, s66, 3\ns_mul_i32 s66, s66, 15360\nv_add_u32 v2, s66, v{vL16}")
            for c in range(5): pend.append(f"ds_write_b128 v2, {R(acc+4*c,4)} offset:{5120*j+1024*c}")
    while pend: k(pend.pop(0))
    k.wait("a")
    for c in range(5): k(f"v_mfma_f32_16x16x32_bf16 {R(4+4*c,4)}, {R(AF+4*c,4)}, v[48:51], 0")
    for i in range(10): k(f"v_pk_add_f32 {R(24+2*i,2)}, {R(24+2*i,2)}, {R(BB+2*i,2)}")
    for i in range(10): k(f"v_pk_add_f32 {R(4+2*i,2)}, {R(4+2*i,2)}, {R(24+2*i,2)} neg_lo:[0,1] neg_hi:[0,1]")
    for i in range(10):
        k(f"v_pk_fma_f32 {R(4+2*i,2)}, {R(4+2*i,2)}, v[0:1], {R(24+2*i,2)} op_sel:[0,1,0] op_sel_hi:[1,1,1]")
        k(f"v_cvt_pk_bf16_f32 v{B2+i}, v{4+2*i}, v{5+2*i}")
        if i == 3: k.m(f"buffer_store_dwordx4 {R(B2,4)}, v45, {SOUT}, s87 offen {OST()}")
        if i == 7: k.m(f"buffer_store_dwordx4 {R(B2+4,4)}, v45, {SOUT}, s87 offen offset:64 {OST()}")
    k.m(f"buffer_store_dwordx2 {R(B2+8,2)}, v46, {SOUT}, s87 offen offset:128 {OST()}")
```

```python
from g1 import *
import g0, g1
sG, sW8 = "s100", "s101"
W2R = 108
vPO, vPE, vPG, vSO, vS1, vL16, vL16X, vTS = range(248, 256)
class LG:
    def __init__(s, k): s.k = k; s.q = []; s.done = 0
    def __call__(s, txt, tag=None): s.k(txt); s.q.append(tag)
    def wait(s, *tags):
        idx = max(i for i, t in enumerate(s.q) if t in tags) + 1
        if idx <= s.done: return
        n = min(len(s.q) - idx, 15); s.k(f"s_waitcnt lgkmcnt({n})"); s.done = len(s.q) - n
KP = 64; TV = 116; vUL = 72
def kaddr(k):
    k(f"""s_lshl2_add_u32 s66, {sPAIR}, {sW}
    s_lshl_b32 s67, s66, 7
    v_lshl_add_u32 v70, v0, 1, s67
    s_and_b32 s66, s66, -2
    v_mov_b32 v71, s66""")
def kload(k, j, dst=KP):
    for i, p in enumerate((6, 8, 10, 12)): k.m(f"global_load_ushort v{dst+i}, v70, s[{p}:{p+1}] offset:{512*j}", "kp")
    for i, p in enumerate((14, 16)): k.m(f"global_load_ushort v{dst+4+i}, v71, s[{p}:{p+1}] offset:{4*j}", "kp")
def cm(d, x, e, t, pk):
    if pk: return [f"v_pk_mul_f32 {R(t,2)}, {R(x,2)}, {R(e,2)} op_sel:[0,0] op_sel_hi:[1,0]",
                   f"v_pk_fma_f32 {R(d,2)}, {R(x,2)}, {R(e,2)}, {R(t,2)} op_sel:[1,1,0] op_sel_hi:[0,1,1] neg_lo:[1,0,0]"]
    return [f"v_mul_f32 v{t}, v{x+1}, v{e+1}", f"v_mul_f32 v{t+1}, v{x+1}, v{e}",
            f"v_fma_f32 v{d+1}, v{x}, v{e+1}, v{t+1}", f"v_fma_f32 v{d}, v{x}, v{e}, -v{t}"]
def kA(k, pk=0):
    L2E = 1.4426950408889634
    hi = struct.unpack("<f", struct.pack("<f", L2E))[0]; lo = L2E - hi
    lar, aim, cr, ci, ldt, dsk = range(KP, KP + 6)
    for r in range(KP, KP + 6): k(f"v_lshlrev_b32 v{r}, 16, v{r}")
    k(f"s_mov_b32 s66, {F(hi)}")
    t2 = [f"""v_mul_f32 v{t}, s66, v{r}
        v_fma_f32 v{t+1}, v{r}, s66, -v{t}
        v_exp_f32 v{t}, v{t}
        v_fmac_f32 v{t+1}, {F(lo)}, v{r}
        v_mul_f32 v{t+1}, {F(0.6931471805599453)}, v{t+1}
        v_fmac_f32 v{t}, v{t}, v{t+1}
        v_cvt_pk_bf16_f32 v{t}, v{t}, v{t}
        v_and_b32 v{r}, 0xffff0000, v{t}""".split("\n") for r, t in ((lar, 2), (ldt, 4))]
    for a, b in zip(*t2): k(a); k(b)
    E1, E8, E256, A0 = 8, 10, 12, 16
    k(f"""v_mul_f32 v2, v{lar}, v{ldt}
    v_mul_f32 v3, v{aim}, v{ldt}
    v_mul_f32 v2, {F(-L2E)}, v2
    v_mul_f32 v3, 0.15915494, v3
    v_add_f32 v{ldt}, v{ldt}, v{ldt}
    v_mul_f32 v{A0}, v{cr}, v{ldt}
    v_mul_f32 v{A0+1}, v{ci}, v{ldt}""")
    t3 = [f"""v_mul_f32 v{t+1}, {F(p)}, v3
        v_mul_f32 v{t}, {F(p)}, v2
        v_fract_f32 v{t+1}, v{t+1}
        v_exp_f32 v{t}, v{t}
        v_cos_f32 v{e}, v{t+1}
        v_sin_f32 v{e+1}, v{t+1}
        v_mul_f32 v{e}, v{e}, v{t}
        v_mul_f32 v{e+1}, v{e+1}, v{t}""".split("\n") for e, p, t in ((E1, 1.0, 4), (E8, 8.0, 6), (E256, 256.0, 34))]
    for x in zip(*t3):
        for y in x: k(y)
    def row(hh, s):
        rho = 8 * (s >> 2) + 4 * hh + (s & 3)
        return rho - (rho > 27)
    rows = []; SA = []; SB = []
    def put(S, x, rw, neg):
        S.append(f"v_cvt_pk_bf16_f32 v{TV+len(rows)}, v{x}, {'-' if neg else ''}v{x+1}"); rows.append(rw)
    for j in range(9):
        if j: SA += cm(A0 + 2*j, A0 + 2*j - 2, E1, 4, pk)
        put(SA, A0 + 2*j, [row(hh, j - 4*hh) for hh in (0, 1) if 0 <= j - 4*hh <= 4], 1)
    for j in range(5):
        SA += cm(A0 + 4*j, A0 + 4*j, E256, 4, pk); put(SA, A0 + 4*j, [row(hh, 5 + j - 2*hh) for hh in (0, 1) if 0 <= j - 2*hh <= 2], 1)
    for hh in (0, 1):
        for j in range(3): SA += cm(A0 + 8*j, A0 + 8*j, E256, 4, pk); put(SA, A0 + 8*j, [row(hh, 8 + j)], 1)
    for q in range(4):
        for j in range(2): SA += cm(A0 + 16*j, A0 + 16*j, E256, 4, pk); put(SA, A0 + 16*j, [row(q & 1, 11 + 2*(q >> 1) + j)], 1)
    for b in range(1, 32):
        if b > 1: SB += cm(14, E8 if b == 2 else 14, E8, 6, pk)
        put(SB, E8 if b == 1 else 14, [30 + b], 0)
    while SA or SB:
        if SB: k(SB.pop(0))
        if SA: k(SA.pop(0))
    return rows
def kaddr2(k):
    k(f"""s_lshr_b32 s66, {sW}, 1
    s_mul_i32 s66, s66, {TCH}
    s_add_u32 s66, s66, {L_TAB}
    s_and_b32 s67, {sW}, 1
    s_lshl_b32 s67, s67, 8
    s_add_u32 s67, s67, s66
    v_lshl_add_u32 v52, v0, 2, s67
    v_and_b32 v58, 31, v0
    v_lshrrev_b32 v59, 5, v0
    v_mul_u32_u24 v54, {TROW}, v58
    v_lshl_add_u32 v54, v59, 4, v54
    v_add_u32 v54, s66, v54
    v_cmp_lt_u32 vcc, 27, v58
    v_subrev_u32 v53, {TROW}, v54
    v_cndmask_b32 v53, v54, v53, vcc
    s_mul_i32 s66, {sW}, {KCOPY}
    s_add_u32 s66, s66, {sKD}
    v_lshlrev_b32 v58, 4, v58
    v_sub_u32 v58, s66, v58
    v_lshlrev_b32 v57, 3, v59
    v_sub_u32 v55, v58, v57
    v_lshlrev_b32 v57, 9, v59
    v_sub_u32 v56, v58, v57
    v_and_b32 v57, 7, v0
    v_lshl_add_u32 v57, v57, 2, s66
    v_add_u32 v55, {4088-512}, v55
    v_add_u32 v56, {4080-3072}, v56
    v_mov_b32 v58, 0x3f80""")
def kB(k, rows):
    k(f"ds_write_b32 v52, v58 offset:{30*TROW}")
    for i, rw in enumerate(rows):
        for r in rw: k(f"ds_write_b32 v52, v{TV+i} offset:{r*TROW}")
def kC(k, hook=lambda j: None):
    dsk = KP + 5
    fa = lambda j: TV + 8 * (j % 7)
    def mf(jj): k(f"v_mfma_f32_32x32x16_bf16 v[16:31], {R(fa(jj),4)}, {R(fa(jj)+4,4)}, {'0' if jj == 0 else 'v[16:31]'}"); hook(jj)
    for j in range(16):
        k(f"ds_read_b128 {R(fa(j),4)}, v53 offset:{32*j}\nds_read_b128 {R(fa(j)+4,4)}, v54 offset:{30*TROW+32*j}")
        if j >= 5: k(f"s_waitcnt lgkmcnt(10)"); mf(j - 5)
    k(f"""v_cmp_eq_u32 vcc, 0, v0
    s_mov_b32 s68, 0xaaaaaaaa
    s_mov_b32 s69, s68
    v_cndmask_b32 v{dsk}, 0, v{dsk}, vcc
    v_mov_b32 v34, 0""")
    for jj in range(11, 16): k(f"s_waitcnt lgkmcnt({2*(15-jj)})"); mf(jj)
    a = list(range(16, 21)); b = [21, 22, 23]; c = [24, 25, 26]; d = [[27, 28, 32], [29, 30, 33]]
    k(f"""s_bitcmp1_b32 {sW}, 0
    v_add_f32 v16, v16, v{dsk}
    v_cndmask_b32 v32, v27, v28, s[68:69]
    v_cndmask_b32 v33, v29, v30, s[68:69]""")
    le, lj = k.label("ke"), k.label("kj")
    k(f"s_cbranch_scc1 {le}")
    def pk(dst, prs):
        for i, (x, y) in enumerate(prs): k(f"v_cvt_pk_bf16_f32 v{dst+i}, v{x}, v{y}")
    pk(36, [(a[3], a[2]), (a[1], a[0]), (b[2], b[1]), (b[0], b[0])])
    pk(40, [(c[2], c[2]), (c[1], c[1]), (c[1], c[0]), (c[0], c[0])])
    for i, (d0, d1, x) in enumerate(d): pk(44 + 4*i, [(d1, d1), (d1, x), (d0, d0), (d0, d0)])
    k(f"s_branch {lj}\n{le}:")
    pk(36, [(a[4], a[3]), (a[2], a[1]), (b[2], b[2]), (b[1], b[0])])
    pk(40, [(c[2], c[2]), (c[2], c[1]), (c[1], c[1]), (c[0], c[0])])
    for i, (d0, d1, x) in enumerate(d): pk(44 + 4*i, [(d1, d1), (d1, d1), (x, d0), (d0, d0)])
    k(f"""v_cvt_pk_bf16_f32 v34, v16, v34
    v_cndmask_b32 v34, 0, v34, vcc
    {lj}:
    ds_write_b64 v55, v[36:37] offset:512
    ds_write_b64 v55, v[38:39]
    ds_write_b128 v56, v[40:43] offset:2048
    ds_write_b128 v56, v[44:47] offset:1024
    ds_write_b128 v56, v[48:51]
    s_mov_b64 exec, 0xff
    ds_write_b32 v57, v34 offset:4096
    s_mov_b64 exec, -1""")
BLK = 18432
def uload(k, dst=vUL):
    k(f"""s_lshl2_add_u32 s76, {sPAIR}, {sW}
    s_lshl_b32 s76, s76, 11
    s_add_u32 s76, s76, {UT}""")
    for j in range(2): k.m(f"buffer_load_dwordx4 {R(dst+4*j,4)}, v{vL16}, {SWS}, s76 offen offset:{1024*j} {SC}", "ul")
def cv_setup(k):
    k(f"""v_bfe_u32 v1, v0, 2, 1
    v_mul_u32_u24 v1, {UCH}, v1
    v_lshrrev_b32 v3, 3, v0
    v_lshl_add_u32 v1, v3, 6, v1
    v_and_b32 v3, 3, v0
    v_lshl_add_u32 v1, v3, 4, v1
    s_lshl_b32 s66, {sW}, 10
    s_add_u32 s66, s66, {L_U + 512}
    v_add_u32 v1, s66, v1
    s_lshr_b32 s74, {sW}, 1
    s_and_b32 s75, {sW}, 1
    s_mul_i32 s66, s74, {UCH}
    s_add_u32 s66, s66, {L_U}
    s_lshl_b32 s70, s75, 8
    s_add_u32 s67, s66, s70
    v_lshl_add_u32 v2, v0, 2, s67
    s_sub_u32 s66, s66, s70
    s_add_u32 s66, s66, {480-192}
    v_and_b32 v9, 15, v0
    v_lshrrev_b32 v10, 4, v0
    v_lshl_add_u32 v3, v9, 5, s66
    v_lshl_add_u32 v3, v10, 4, v3
    s_mul_i32 s66, s74, {KCH}
    s_add_u32 s66, s66, {sKD}
    s_sub_u32 s66, s66, s70
    s_add_u32 s66, s66, {4064 + KCOPY - 512 - 192}
    v_and_b32 v7, 1, v0
    v_mul_u32_u24 v7, {KCOPY + 4}, v7
    v_and_b32 v4, 14, v0
    v_lshl_add_u32 v7, v4, 1, v7
    v_sub_u32 v7, s66, v7
    v_lshl_add_u32 v4, v10, 4, v7
    v_subrev_u32 v5, 1024, v4
    v_subrev_u32 v6, 2048, v4
    v_subrev_u32 v7, 3072, v4
    v_lshlrev_b32 v8, 6, v9
    v_lshl_add_u32 v8, v10, 4, v8
    v_mov_b32 v11, 0""")
def cv_x(k, base, stride):
    k(f"""s_mul_i32 s66, {sW}, {stride}
    s_add_u32 s66, s66, {base}
    v_lshl_add_u32 v9, v0, 4, s66
    s_xor_b32 s66, {sW}, 1
    s_mul_i32 s66, s66, {stride}
    s_add_u32 s66, s66, {base}
    v_lshl_add_u32 v10, v0, 4, s66""")
def cv_u(k, src=vUL):
    k.wait("ul")
    k(f"""ds_write_b128 v1, {R(src,4)}
    ds_write_b128 v1, {R(src+4,4)} offset:512
    ds_write_b32 v2, v11
    s_lshl2_add_u32 s71, {sPAIR}, {sW}
    s_lshl_b32 s71, s71, 11
    s_add_u32 s71, s71, {AT}""")
CA, CFA, CFB = 12, 44, 76
def cv_main(k, fill=lambda i, n: None):
    L = LG(k)
    def rA(i, s):
        o = 128 * (1 - (s & 1)) + 16 * (3 - i)
        return [(f"ds_read2_b32 {R(CFA+4*s+2*e,2)}, v{4+(s>>1)} offset0:{o+2*e} offset1:{o+2*e+1}", f"A{i}{s}") for e in range(2)]
    def rB(i, d): return [(f"ds_read_b128 {R(CFB+4*d,4)}, v3 offset:{512*d + 64*(3-i)}", f"B{i}{d}")]
    pend = rB(0, 7) + rA(0, 0)
    for d in range(6, -1, -1): pend += rB(0, d)
    for x in pend: L(*x)
    pend = []
    for s in range(1, 8): pend += rA(0, s)
    for i in range(4):
        n = 0
        for s in range(8):
            for d in range(7 - s, -1, -1):
                while any(t in (f"A{i}{s}", f"B{i}{d}") for _, t in pend): L(*pend.pop(0))
                L.wait(f"A{i}{s}", f"B{i}{d}")
                a = R(CA + 4*(s + d), 4)
                k(f"v_mfma_f32_16x16x32_bf16 {a}, {R(CFA+4*s,4)}, {R(CFB+4*d,4)}, {'0' if i == 0 and s == 0 else a}")
                if i < 3:
                    if d == 7 - s: pend = rB(i + 1, d) + pend
                    if d == 0: pend += rA(i + 1, s)
                if pend: L(*pend.pop(0))
                fill(i, n); n += 1
    le, lj = k.label("cx"), k.label("cy")
    k(f"s_cmp_eq_u32 s75, 0\ns_nop 6\ns_cbranch_scc1 {le}")
    for t in range(4): k(f"ds_write_b128 v9, {R(CA+4*t,4)} offset:{1024*t}")
    k(f"s_branch {lj}\n{le}:")
    for t in range(4): k(f"ds_write_b128 v9, {R(CA+16+4*t,4)} offset:{1024*t}")
    k(f"{lj}:")
def cv_fin(k, mid=lambda: None):
    le, lj = k.label("cx"), k.label("cy")
    k(f"s_cmp_eq_u32 s75, 0\ns_cbranch_scc1 {le}")
    for t in range(4): k(f"ds_read_b128 {R(CA+4*t,4)}, v10 offset:{1024*t}")
    k(f"s_branch {lj}\n{le}:")
    for t in range(4): k(f"ds_read_b128 {R(CA+16+4*t,4)}, v10 offset:{1024*t}")
    k(f"{lj}:")
    mid()
    for tp in range(2):
        k(f"s_waitcnt lgkmcnt({2-2*tp})")
        for p in range(4): k(f"v_pk_add_f32 {R(CA+8*tp+2*p,2)}, {R(CA+8*tp+2*p,2)}, {R(CA+16+8*tp+2*p,2)}")
        for p in range(4): k(f"v_cvt_pk_bf16_f32 v{44+4*tp+p}, v{CA+8*tp+2*p}, v{CA+8*tp+2*p+1}")
        k.m(f"buffer_store_dwordx4 {R(44+4*tp,4)}, v8, {SWS}, s71 offen offset:{1024*tp} {SC}", "ast")
def wf(i): return R(W2R + 4*i, 4)
def w2_setup(k):
    k(f"""v_lshlrev_b32 v{vL16}, 4, v0
    s_cmp_ge_u32 {sW8}, 6
    s_cselect_b32 s66, {OOB}, 0
    v_add_u32 v{vL16X}, s66, v{vL16}
    s_mul_i32 s85, {sCHT}, 54
    s_add_u32 s85, s85, {sW8}
    s_mul_i32 s85, s85, 5120
    s_add_u32 s85, s85, {W2P}""")
def w2_loads(k, g, first):
    order = list(range(first, 35)) + list(range(first)); out = []; cur = 0
    for i in order:
        s, q = divmod(i, 5); c = q if q == 4 else q ^ (2*g)
        off = 40960*s + 1024*c; base = off & ~4095; d = base - cur; cur = base
        def f(i=i, s=s, d=d, o=off & 4095):
            if X.get('now2'): return
            if d: k(f"s_add_u32 s85, s85, {d & 0xffffffff}")
            k.m(f"buffer_load_dwordx4 {wf(i)}, v{vL16X if s == 6 else vL16}, {SWS}, s85 offen offset:{o} {SC}", "w2p")
        out.append(f)
    return out
RING = 52
def hf(j, s): return R(RING + 28*(j & 1) + 4*s, 4)
def h_loads(k):
    def mk(i):
        def f():
            j, s = divmod(i, 7)
            if s == 0:
                k(f"""s_add_u32 s86, {sW}, {1+j}
                s_and_b32 s86, s86, 3
                s_lshl2_add_u32 s86, {sTK}, s86
                s_mul_i32 s86, s86, 54
                s_add_u32 s86, s86, {sW8}
                s_lshl_b32 s86, s86, 10
                s_add_u32 s86, s86, {H}""")
            else: k("s_add_u32 s86, s86, 8192")
            k.m(f"buffer_load_dwordx4 {hf(j, s)}, v{vL16X if s == 6 else vL16}, {SWS}, s86 offen {SC}", f"h{j}_{s}")
        return f
    return [mk(i) for i in range(28)]
def g2_setup(k):
    k(f"""v_and_b32 v50, 15, v0
    s_lshl2_add_u32 s68, {sTK}, {sW}
    s_lshl_b32 s69, s68, 9
    s_add_u32 s69, s69, {ST}
    v_lshlrev_b32 v1, 5, v50""")
    k.m(f"buffer_load_dword v1, v1, {SWS}, s69 offen offset:28 {SC}", "g")
    k(f"s_mul_i32 s79, {sCHT}, 160\nv_lshl_add_u32 v45, v50, 3, s79")
    k.m(f"global_load_dword v{vPG}, v45, s[26:27] offset:32", "g")
    k(f"""v_and_b32 v47, 48, v0
    v_mul_u32_u24 v45, 1280, v50
    v_lshrrev_b32 v46, 1, v47
    v_add_u32 v46, v45, v46
    v_add_u32 v45, v45, v47
    s_mul_i32 s87, s68, 20480
    s_add_u32 s87, s87, s79
    s_cmp_eq_u32 {sG}, 0
    s_cselect_b32 s72, s87, {OOB}
    s_lshl_b32 s69, {sG}, 6
    s_add_u32 s87, s87, s69
    s_add_u32 s76, s79, s69
    v_lshl_add_u32 v44, v50, 12, v47
    v_and_b32 v3, 12, v0
    v_lshl_add_u32 v3, v3, 12, v44
    s_mul_i32 s88, {sCHT}, {80*4096}
    s_lshr_b32 s69, {sTK}, 3
    s_lshl_b32 s69, s69, 10
    s_add_u32 s88, s88, s69
    s_and_b32 s69, s68, 15
    s_lshl_b32 s69, s69, 6
    s_add_u32 s88, s88, s69
    s_add_u32 s88, s88, {AT + 262144}
    s_lshl_b32 s69, {sG}, 17
    s_add_u32 s73, s88, s69
    s_sub_u32 s73, s73, 262144
    s_add_u32 s74, s73, 16384
    v_lshlrev_b32 v48, 2, v50
    v_and_b32 v48, 48, v48
    v_cmp_eq_u32 vcc, v48, v47
    v_and_b32 v48, 1, v0
    v_lshlrev_b32 v48, 4, v48
    v_mov_b32 v49, 0x3f80
    v_lshlrev_b32 v48, v48, v49
    v_cndmask_b32 v51, 0, v48, vcc
    s_bfe_u32 s69, {sTK}, 0x10002
    s_lshl_b32 s69, s69, 1
    v_bfe_u32 v50, v0, 1, 1
    v_add_u32 v50, s69, v50""")
    for i in (0, 1): k(f"v_cmp_eq_u32 vcc, {i}, v50\nv_cndmask_b32 v{48+i}, 0, v51, vcc")
    k("v_cmp_eq_u32 vcc, 2, v50\nv_cmp_eq_u32 s[70:71], 3, v50\nv_cndmask_b32 v50, 0, v51, vcc\nv_cndmask_b32 v51, 0, v51, s[70:71]")
def gemm2(k, hq, hook, q, sb=2, np_=3):
    pend = []; AF = 52; BB = 4; B2 = 16; Pb = [W2R, W2R + 12, W2R + 24, 64]; own = (0, 1, 4)
    for j in range(4):
        acc = 4 + 20 * (j & 1)
        for s in range(7):
            hook(7*j + s)
            if j == 3 and s == sb:
                assert not pend and not q.q
                k(f"""s_waitcnt lgkmcnt(0)
                s_barrier
                v_add_u32 v22, s76, v47
                v_lshrrev_b32 v23, 1, v47
                v_add_u32 v23, s79, v23""")
                for i, (v, so) in enumerate(((3, "s73"), (3, "s74"), (44, "s88"))):
                    pend.append(lambda i=i, v=v, so=so: k.m(f"buffer_load_dwordx4 {R(AF+4*i,4)}, v{v}, {SWS}, {so} offen {SC}", "a"))
                pend.append(lambda: k.m(f"global_load_dwordx4 {R(B2,4)}, v22, s[26:27]", "b2"))
                pend.append(lambda: k.m(f"global_load_dwordx2 {R(B2+4,2)}, v23, s[26:27] offset:128", "b2"))
                k(f"""s_mul_i32 s66, {sW8}, {BLK}
                v_add_u32 v2, s66, v{vL16}
                s_xor_b32 s66, {sW8}, 4
                s_mul_i32 s66, s66, {BLK}
                v_add_u32 v47, s66, v{vL16}""")
                L = LG(k); rd = []
                src = [(jj, o) for jj in range(3) for o in (0, 1)]; dst = [BB] + Pb + [Pb[0]]
                def R_(n): return [lambda n=n, i=i, q=q: L(f"ds_read_b128 {R(dst[n]+4*i,4)}, v{47 if src[n][1] else 2} offset:{5120*src[n][0]+1024*(q if q == 4 else q + 2*src[n][1])}", n) for i, q in enumerate(own)]
                def A_(n): return [lambda n=n: L.wait(n)] + [f"v_add_f32 v{BB+i}, v{BB+i}, v{dst[n]+i}" for i in range(12)]
                ld = pend; pend = []
                for n in range(5): pend += R_(n) + [ld[n]]
                pend += A_(1) + R_(5) + A_(2) + A_(3) + A_(4) + A_(5)
            k.wait(f"h{j}_{s}")
            for c in ((2, 3, 4, 0, 1) if (j, s) == (3, 6) else range(5)):
                a = R(acc + 4*c, 4)
                k(f"v_mfma_f32_16x16x32_bf16 {a}, {wf(5*s+c)}, {hf(j, s)}, {'0' if s == 0 else a}")
                if s >= 1 or c >= 2:
                    for _ in range(np_ if j == 3 and s >= sb else 1):
                        if pend:
                            x = pend.pop(0); k(x) if isinstance(x, str) else x()
                        elif j == 0 or s >= 3: q.pop()
            if hq: hq.pop(0)()
        if j < 3:
            pend.append(f"s_add_u32 s66, {sW}, {1+j}\ns_and_b32 s66, s66, 3\ns_lshl2_add_u32 s66, {sG}, s66\ns_mul_i32 s66, s66, {BLK}\nv_add_u32 v2, s66, v{vL16}")
            for c in range(5): pend.append(f"ds_write_b128 v2, {R(acc+4*c,4)} offset:{5120*j+1024*c}")
    while pend:
        x = pend.pop(0); k(x) if isinstance(x, str) else x()
    for i in range(3): k(f"ds_write_b128 v2, {R(24+8+4*i,4)} offset:{15360+1024*i}")
    hook(28); k.wait("a"); hook(29)
    D = W2R; Q = W2R + 12; U = W2R + 24
    for i in range(3): k(f"v_mfma_f32_16x16x32_bf16 {R(D+4*i,4)}, {R(AF+4*i,4)}, v[48:51], 0")
    k.wait("b2")
    for i in range(6): k(f"v_lshlrev_b32 v{U+2*i}, 16, v{B2+i}\nv_and_b32 v{U+2*i+1}, 0xffff0000, v{B2+i}")
    k("s_waitcnt lgkmcnt(0)\ns_barrier"); hook(30)
    for i in range(3): k(f"ds_read_b128 {R(Q+4*i,4)}, v47 offset:{15360+1024*i}")
    for i in range(6): k(f"v_pk_add_f32 {R(BB+2*i,2)}, {R(BB+2*i,2)}, {R(U+2*i,2)}")
    for i in range(6): k(f"v_pk_add_f32 {R(BB+2*i,2)}, {R(BB+2*i,2)}, {R(24+4*own[i>>1]+2*(i&1),2)}")
    for h, (lo, hi) in enumerate(((0, 4), (4, 6))):
        k(f"s_waitcnt lgkmcnt({1-h})")
        for i in range(lo, hi): k(f"v_pk_add_f32 {R(BB+2*i,2)}, {R(BB+2*i,2)}, {R(Q+2*i,2)}")
        for i in range(2*lo, 2*hi): k(f"v_sub_f32 v{D+i}, v{D+i}, v{BB+i}")
        for i in range(2*lo, 2*hi): k(f"v_fma_f32 v{D+i}, v{D+i}, v1, v{BB+i}")
        for i in range(lo, hi): k(f"v_cvt_pk_bf16_f32 v{B2+i}, v{D+2*i}, v{D+2*i+1}")
        if h == 0: k.m(f"buffer_store_dwordx4 {R(B2,4)}, v45, {SOUT}, s87 offen {OST()}")
        else: k.m(f"buffer_store_dwordx2 {R(B2+4,2)}, v46, {SOUT}, s72 offen offset:128 {OST()}")

def gemm1c(k, pre_b, post_b, fill):
    ACC = g1.ACC; L = LG(k)
    def reads(g):
        if g > 39: return []
        st, ks = divmod(g, 4); up = (st % 4) >> 1; o = (st & 1) * 32768; f = FR + 16 * (g & 1)
        r = []
        for t in range(2):
            for e in range(2): r.append((f"ds_read_b64_tr_b16 {R(f+4*t+2*e,2)}, v{WA+2*up+t} offset:{o + (16*ks+4*e)*256}", f"A{t}_{g}"))
            r.append((f"ds_read_b128 {R(f+8+4*t,4)}, v{XA+4*up+ks} offset:{o + 4096*t}", f"B{t}_{g}"))
        if X.get("nord") and g > 1: r = [("s_nop 0", t) for _, t in r]
        return r
    k("s_barrier")
    for r in reads(0): L(*r)
    for g in range(40):
        st, ks = divmod(g, 4); f = FR + 16 * (g & 1); bar = ks == 3 and st < 9
        def mf(ti, tj):
            a = ACC + 16 * (2*ti + tj); L.wait(f"A{ti}_{g}", f"B{tj}_{g}")
            k(f"v_mfma_f32_32x32x16_bf16 {R(a,16)}, {R(f+4*ti,4)}, {R(f+8+4*tj,4)}, {'0' if g == 0 else R(a,16)}")
        def cs():
            L.wait(f"A0_{g}")
            if not X.get("nocs"): k(f"v_mfma_f32_16x16x32_bf16 v[52:55], v[48:51], {R(f,4)}, {'0' if g == 0 else 'v[52:55]'}")
        rd = reads(g + 1)
        if bar:
            mf(0, 0); L.wait(f"B1_{g}"); pre_b(st); k("s_barrier")
            for r in rd[:3]: L(*r)
            mf(1, 0)
            for r in rd[3:]: L(*r)
            post_b(st); mf(0, 1); fill(g, 2); mf(1, 1); cs()
        else:
            mf(0, 0)
            for r in rd[:3]: L(*r)
            if g == 39: cs()
            mf(1, 0)
            for r in rd[3:]: L(*r)
            mf(0, 1); fill(g, 2)
            if g == 39: k("v_cmp_gt_u32 vcc, 32, v0\nds_write_b32 v14, v52")
            mf(1, 1); fill(g, 3)
            if g < 39: cs()
    k("s_waitcnt lgkmcnt(0)\ns_barrier\nds_read_b32 v53, v15")
    k.wait("st")
    for ti in range(2):
        a = 144 + 4*ti
        if ti: k("s_waitcnt lgkmcnt(0)")
        k(f"""v_cvt_pk_bf16_f32 v{a}, v{52+ti}, v{52+ti}
        v_lshl_or_b32 v{a+2}, v{56+ti}, 16, v{56+ti}
        v_and_b32 v{a}, 0xffff0000, v{a}
        v_cndmask_b32 v{a+2}, 0, v{a+2}, vcc
        v_sub_f32 v{a+1}, v{52+ti}, v{a}
        v_mov_b32 v{a+3}, 0
        v_cvt_pk_bf16_f32 v{a}, v{a}, v{a+1}
        v_mov_b32 v{a+1}, v{a}""")
        for tj in range(2):
            c = ACC + 16 * (2*ti + tj)
            k(f"v_mfma_f32_32x32x16_bf16 {R(c,16)}, {R(a,4)}, {R(64+8*tj,4)}, {R(c,16)}")
            if ti:
                for i in range(6): k(f"v_mov_b32 v{2+6*tj+i}, v{68+8*tj+(i>>1)}")
```

```python
from g2 import *
L_CP, L_HP, L_A1 = 16384, 57344, 118784
def run(k, x): k(x) if isinstance(x, str) else x()
def gload(k):
    k(f"""v_and_b32 v50, 15, v0
    s_lshl2_add_u32 s68, {sTK}, {sW}
    s_lshl_b32 s69, s68, 9
    s_add_u32 s69, s69, {ST}
    v_lshlrev_b32 v1, 5, v50""")
    k.m(f"buffer_load_dword v1, v1, {SWS}, s69 offen offset:28 {SC}", "g")
    k(f"v_and_b32 v47, 48, v0\ns_mul_i32 s79, {sCHT}, 160\ns_mul_i32 s69, {sW}, 5120\ns_add_u32 s69, s69, {L_CP}\nv_add_u32 v2, s69, v{vL16}")
def g2c_setup(k):
    gload(k)
    k(f"v_add_u32 v45, s79, v47\nv_lshrrev_b32 v46, 1, v47\nv_add_u32 v46, s79, v46")
    k.m(f"global_load_dword v{vPG}, v45, s[26:27] offset:64", "g")
    k(f"""v_lshl_add_u32 v44, v50, 12, v47
    v_and_b32 v3, 12, v0
    v_lshl_add_u32 v3, v3, 12, v44
    s_mul_i32 s88, {sCHT}, {80*4096}
    s_lshr_b32 s69, {sTK}, 3
    s_lshl_b32 s69, s69, 10
    s_add_u32 s88, s88, s69
    s_and_b32 s69, s68, 15
    s_lshl_b32 s69, s69, 6
    s_add_u32 s88, s88, s69
    s_add_u32 s88, s88, {AT}
    v_lshlrev_b32 v48, 2, v50
    v_and_b32 v48, 48, v48
    v_cmp_eq_u32 vcc, v48, v47
    v_and_b32 v48, 1, v0
    v_lshlrev_b32 v48, 4, v48
    v_mov_b32 v49, 0x3f80
    v_lshlrev_b32 v48, v48, v49
    v_cndmask_b32 v51, 0, v48, vcc
    s_bfe_u32 s69, {sTK}, 0x10002
    s_lshl_b32 s69, s69, 1
    v_bfe_u32 v50, v0, 1, 1
    v_add_u32 v50, s69, v50
    s_mul_i32 s69, {sW}, 15360
    s_add_u32 s69, s69, {L_HP}
    v_add_u32 v47, s69, v{vL16}""")
    for i in (0, 1): k(f"v_cmp_eq_u32 vcc, {i}, v50\nv_cndmask_b32 v{48+i}, 0, v51, vcc")
    k("v_cmp_eq_u32 vcc, 2, v50\nv_cmp_eq_u32 s[70:71], 3, v50\nv_cndmask_b32 v50, 0, v51, vcc\nv_cndmask_b32 v51, 0, v51, s[70:71]")
def g2h_setup(k):
    gload(k)
    k(f"""v_mul_u32_u24 v45, 1280, v50
    v_lshrrev_b32 v46, 1, v47
    v_add_u32 v46, v45, v46
    v_add_u32 v45, v45, v47
    s_mul_i32 s87, s68, 20480
    s_add_u32 s87, s87, s79
    s_mul_i32 s69, {sW}, 15360
    s_add_u32 s69, s69, {L_HP + 10240}
    v_add_u32 v47, s69, v{vL16}
    v_add_u32 v48, {L_A1 - L_CP}, v2""")
def mfs(k, j, s, hq, pend, init, npop, lead, L=None):
    acc = 4 + 20 * (j & 1)
    k.wait(f"h{j}_{s}")
    for c in range(5):
        a = R(acc + 4*c, 4)
        if L: L.wait(c)
        k(f"v_mfma_f32_16x16x32_bf16 {a}, {wf(5*s+c)}, {hf(j, s)}, {'0' if s == 0 and not init else a}")
        if s >= 1 or c >= 2:
            for _ in range(npop):
                if pend: run(k, pend.pop(0))
        if c == (4 if lead == 14 else 1) and hq: hq.pop(0)()
def gemm2c(k, hq, hook, ckb):
    pend = []; lead = 28 - len(hq); AF = 52; B2 = W2R; P1 = W2R + 20; D = W2R + 40; U = W2R + 60
    def aloads():
        o = []
        for c in range(5):
            def f(c=c):
                if c: k(f"s_add_u32 s88, s88, {16384 if c & 1 else 131072-16384}")
                k.m(f"buffer_load_dwordx4 {R(AF+4*c,4)}, v{44 if c == 4 else 3}, {SWS}, s88 offen {SC}", "a")
            o.append(f)
        return o
    for j in range(4):
        for s in range(7):
            hook(7*j + s)
            if j and s == 2:
                assert not pend
                k("s_waitcnt lgkmcnt(0)\ns_barrier"); hook(100 + j - 1)
                if j == 3:
                    if ckb == 2: pend += aloads()
                    pend += [f"ds_read_b128 {R(4+4*c,4)}, v47 offset:{1024*c}" for c in range(5)]
                    pend += [lambda: k.m(f"global_load_dwordx4 {R(B2,4)}, v45, s[26:27]", "b2"), lambda: k.m(f"global_load_dwordx4 {R(B2+4,4)}, v45, s[26:27] offset:64", "b2"),
                             lambda: k.m(f"global_load_dwordx2 {R(B2+8,2)}, v46, s[26:27] offset:128", "b2")]
            mfs(k, j, s, hq, pend, False, 1, lead)
        if j < 3: pend += [f"ds_write_b128 v2, {R(4+20*(j&1)+4*c,4)} offset:{20480*(j&1)+1024*c}" for c in range(5)]
    assert not pend
    hook(28); k("s_barrier")
    if ckb == 3:
        for f in aloads(): f()
    for c in range(5): k(f"ds_read_b128 {R(P1+4*c,4)}, v47 offset:{5120+1024*c}")
    k("s_waitcnt lgkmcnt(5)")
    for i in range(20): k(f"v_add_f32 v{4+i}, v{4+i}, v{24+i}")
    k.wait("b2")
    for i in range(10): k(f"v_lshlrev_b32 v{U+2*i}, 16, v{B2+i}\nv_and_b32 v{U+2*i+1}, 0xffff0000, v{B2+i}")
    k(f"v_add_u32 v2, {L_A1 - L_CP}, v2\nv_sub_f32 v45, 1.0, v1\ns_waitcnt lgkmcnt(0)")
    for i in range(20): k(f"v_add_f32 v{U+i}, v{U+i}, v{P1+i}")
    hook(29); k.wait("a"); hook(30)
    for c in range(5):
        k(f"v_mfma_f32_16x16x32_bf16 {R(D+4*c,4)}, {R(AF+4*c,4)}, v[48:51], 0")
        for i in range(4*c, 4*c + 4): k(f"v_add_f32 v{4+i}, v{4+i}, v{U+i}")
    for c in range(5):
        for i in range(4*c, 4*c + 4): k(f"v_mul_f32 v{4+i}, v45, v{4+i}")
        for i in range(4*c, 4*c + 4): k(f"v_fmac_f32 v{4+i}, v1, v{D+i}")
        k(f"ds_write_b128 v2, {R(4+4*c,4)} offset:{1024*c}")
    k("s_waitcnt lgkmcnt(0)\ns_barrier")
def gemm2h(k, hq, hook, q, sb2, sb3):
    pend = []; lead = 28 - len(hq); A1 = W2R; P2 = W2R + 20
    for j in range(4):
        for s in range(7):
            hook(7*j + s); L = None
            if s == 0 and j < 3:
                k("s_waitcnt lgkmcnt(0)\ns_barrier"); L = LG(k)
                for c in range(5): L(f"ds_read_b128 {R(4+20*(j&1)+4*c,4)}, v2 offset:{20480*(j&1)+1024*c}", c)
                p0 = pend; pend = []
                for x in p0[:1]: k(x)
                for x in p0[1:]: L(x)
            if (j, s) == (2, sb2): k("s_waitcnt lgkmcnt(0)\ns_barrier")
            if (j, s) == (3, sb3):
                assert not pend
                k("s_waitcnt lgkmcnt(0)\ns_barrier"); hook(103); L2 = LG(k)
                for c in range(5):
                    L2(f"ds_read_b128 {R(A1+4*c,4)}, v48 offset:{1024*c}", c); L2(f"ds_read_b128 {R(P2+4*c,4)}, v47 offset:{1024*c}", c)
                pend = ["v_sub_f32 v1, 1.0, v1"]
                for c in range(5): pend += [lambda c=c: L2.wait(c)] + [f"v_fmac_f32 v{A1+i}, v1, v{P2+i}" for i in range(4*c, 4*c + 4)]
            if j == 0 and s == 1: pend = [q.pop] * len(q.q)
            mfs(k, j, s, hq, pend, j < 3, 2 if j == 3 and s > sb3 else 0 if (j, s) == (3, sb3) else 1, lead, L)
        assert j == 3 or not pend
        if j < 3:
            pend.append(f"s_add_u32 s66, {sW}, {1+j}\ns_and_b32 s66, s66, 3\ns_mul_i32 s66, s66, 15360\ns_add_u32 s66, s66, {L_HP}\nv_add_u32 v3, s66, v{vL16}")
            pend += [f"ds_write_b128 v3, {R(4+20*(j&1)+4*c,4)} offset:{5120*j+1024*c}" for c in range(5)]
    while pend: run(k, pend.pop(0))
    hook(28)
    for lo, hi, n, v in ((0, 4, 4, 45), (4, 8, 4, 45), (8, 10, 2, 46)):
        for i in range(2*lo, 2*hi): k(f"v_fmac_f32 v{A1+i}, v1, v{24+i}")
        for i in range(lo, hi): k(f"v_cvt_pk_bf16_f32 v{4+i}, v{A1+2*i}, v{A1+2*i+1}")
        k.m(f"buffer_store_dwordx{n} {R(4+lo,n)}, v{v}, {SOUT}, s87 offen offset:{16*lo} {OST()}")
```

```python
from gen import *
SDB = "s[92:95]"
vPO, vPE, vPG, vSO, vS1 = 224, 225, 226, 227, 228
def stamp(k, n, on):
    if on: k(f"s_memrealtime s[96:97]\ns_memtime s[100:101]\ns_waitcnt lgkmcnt(0)\nv_writelane_b32 v229, s96, {n}\nv_writelane_b32 v229, s100, {n+16}")
def poll_setup(k, nl, target):
    k(f"""s_cmp_eq_u32 {sW}, 0
    s_cselect_b32 s89, {nl}, 0
    v_cmp_gt_u32 s[90:91], s89, v0
    v_lshlrev_b32 v{vPO}, 8, v0
    v_mov_b32 v{vPE}, {OOB}
    v_cndmask_b32 v{vPO}, v{vPE}, v{vPO}, s[90:91]
    v_cndmask_b32 v{vPE}, 0, {target}, s[90:91]""")
def poll_issue(k, srd, so): k.m(f"buffer_load_dword v{vPG}, v{vPO}, {srd}, {so} offen sc1", "poll")
def poll_check(k, srd, so):
    l, d = k.label("sp"), k.label("sd")
    k.wait("poll")
    k(f"""s_mov_b32 s89, 0x20000
    {l}:
    v_cmp_ne_u32 s[90:91], v{vPE}, v{vPG}
    s_sub_u32 s89, s89, 1
    s_cselect_b64 s[90:91], 0, s[90:91]
    s_cmp_eq_u64 s[90:91], 0
    s_cbranch_scc1 {d}
    buffer_load_dword v{vPG}, v{vPO}, {srd}, {so} offen sc1
    s_waitcnt vmcnt(0)
    s_branch {l}
    {d}:""")
def signal(k, so): k.m(f"buffer_atomic_add v{vS1}, v{vSO}, {SWS}, {so} offen sc1", "sig")
def single(ts=0, a0=0, a1=0, pf=1, sg0=3, ck0=8, wl=0, wg=1, s1=1, early=0, d0=14, sg2=8, ck2=34, cr=4):
    k = newk(NAME + "_kernel"); n = k.name
    prologue(k, pf); stamp(k, 0, ts)
    isF = f"s_cmp_ge_u32 {sI}, 28\ns_cbranch_scc1 {n}"
    g1_addr(k)
    k(f"""s_or_b32 s66, s2, {sW}
    s_cmp_eq_u32 s66, 0
    s_cselect_b32 s98, 0, {OOB}
    v_lshlrev_b32 v{vPO}, 8, v0
    v_mov_b32 v{vPE}, 0
    s_mov_b32 s94, 256
    s_mov_b32 s95, 0x20000""")
    srds(k); k("s_mov_b64 s[92:93], s[32:33]")
    k.m(f"buffer_store_dword v{vPE}, v{vPO}, {SWS}, s98 offen sc1", "zero")
    def sigregs(k):
        k(f"""s_cmp_eq_u32 {sW}, 0
        s_cselect_b32 s66, 1, 0
        v_cmp_gt_u32 vcc, s66, v0
        v_mov_b32 v{vS1}, {OOB}
        v_cndmask_b32 v{vSO}, v{vS1}, 0, vcc
        v_mov_b32 v{vS1}, 1""")
    k(f"{isF}_f0")
    r = Rec(k, 160)
    d = g1_dma(k, 0); side_addr(r)
    for f in d: f(); r.pop(5)
    r.flush(); side_load(r); r.flush()
    q = Rec(k); gemm1_setup(q); gemm1_sel(q); sigregs(q)
    for st in (1, 2, 3):
        for f in g1_dma(k, st): f(); q.pop(3)
    q.flush()
    k.wait("zero")
    k.m(f"buffer_store_dword v{vS1}, v{vSO}, {SDB}, s98 offen sc1", "sig")
    stamp(k, 1, ts)
    side_addr2(r); poll_setup(r, 1, 1); r(f"s_lshl_b32 s98, {sX}, 8")
    wq = []; wq0 = []
    def pre_b(st):
        if st == sg0: r.flush(); k.wait("sst"); poll_check(k, SDB, "0")
        if st == ck0: r.flush(); stamp(k, 2, ts); poll_check(k, SWS, "0")
    def post_b(st):
        if st == 0: side_do(r); r.do(lambda: poll_issue(k, SDB, "0"))
        if st == sg0:
            signal(k, "s98"); r.remap = 0
            poll_setup(r, 8, 32); gemm1_setup2(r); kgen_addr(r); wq.extend(w2_prefetch(r, k)); wq0.extend(wq)
        if st == ck0 - 1: r.do(lambda: poll_issue(k, SWS, "0"))
        if st == 6: kgen_load(r, 0)
        if st == ck0: stamp(k, 3, ts); stats_load(r); conv_load(r)
    def fill(g, i):
        r.pop((2, 1, 4, 3)[i] if g < 28 else (1, 0, 1, 0)[i])
        if g >= 4 * ck0 + 7 and i in (1, 3)[:wl]: wq.pop(0)()
    gemm1(k, pre_b, post_b, fill)
    assert not r.q
    stamp(k, 4, ts)
    def popw(m=1):
        for _ in range(m):
            if wq: wq.pop(0)()
    gelu(k, lambda i: popw(wg))
    vm = list(k.vm)
    k(f"s_lshl_b32 s98, {sRB}, 8\ns_add_u32 s98, s98, 2048\ns_branch {n}_c\n{n}_f0:")
    k.vm = []
    kgen_addr(k); kgen_load(k, 0); side_addr(k); side_load(k); kgen_load(k, 1, 64); kgen_load(k, 2, 70)
    side_addr2(k); sigregs(k); poll_setup(k, 1, 1)
    k(f"s_lshl_b32 s98, {sX}, 8\ns_mov_b32 {sKD}, 0\ns_mov_b32 {sCNT}, 2")
    k.wait0(); k("s_barrier"); stamp(k, 1, ts)
    side_do(k); poll_issue(k, SDB, "0")
    stamp(k, 2, ts)
    k(f"{n}_f1:")
    def fb1(): k.wait0(); poll_check(k, SDB, "0")
    def fa1(): signal(k, "s98"); k(f"s_mov_b32 s98, {OOB}")
    kgen(k, before_b1=fb1, after_b1=fa1)
    for i in range(6): k(f"v_mov_b32 v{KP+i}, v{64+i}\nv_mov_b32 v{64+i}, v{70+i}")
    k(f"s_add_u32 {sKD}, {sKD}, {KPAIR}\ns_sub_u32 {sCNT}, {sCNT}, 1\ns_cmp_lg_u32 {sCNT}, 0\ns_barrier\ns_cbranch_scc1 {n}_f1")
    stamp(k, 3, ts)
    poll_setup(k, 8, 32); poll_issue(k, SWS, "0"); w2_prefetch(k, k); poll_check(k, SWS, "0")
    k(f"s_barrier\ns_mov_b32 {sKD}, 0\ns_mov_b32 {sCNT}, 2")
    conv_load(k)
    k.wait0()
    stamp(k, 4, ts)
    k(f"{n}_f3:")
    def nxt():
        k(f"s_add_u32 {sPAIR}, {sPAIR}, 1"); conv_load(k)
    conv(k, after_b1=nxt, before_b2=lambda: k.wait("ul"))
    k(f"s_add_u32 {sKD}, {sKD}, {KPAIR}\ns_sub_u32 {sCNT}, {sCNT}, 1\ns_cmp_lg_u32 {sCNT}, 0\ns_cbranch_scc1 {n}_f3")
    for f in wq0[:len(wq0) - len(wq)]: f()
    k.vm = vm
    k(f"{n}_c:\ns_mov_b32 {sKD}, {L_KD}")
    stamp(k, 5, ts)
    k.wait("kp")
    def wh(): k.wait("hst")
    def sg(): signal(k, "s98"); stamp(k, 14, ts)
    kgen(k, fill=popw, before_b1=wh if s1 == 0 else None, after_b1=sg if s1 == 0 else None)
    stamp(k, 6, ts)
    hq = h_loads(k)
    def s1check(): stamp(k, 7, ts); poll_check(k, SWS, "s99"); stamp(k, 8, ts)
    def pre_i(i):
        if s1 >= 2 and i == s1 - 1: wh(); k("s_barrier"); sg()
        if i == 1:
            poll_setup(k, 1, 14)
            k(f"s_lshr_b32 s99, {sTK}, 1\ns_lshl_b32 s99, s99, 8\ns_add_u32 s99, s99, 2048")
        if i == 3 and early: popw(99); s1check(); k("s_barrier")
    def cfill(i, m):
        if i == 3 - early and m == 12: poll_issue(k, SWS, "s99")
        if m % cr == cr - 1:
            if i == 3 and early: hq.pop(0)()
            else: popw()
    def cb2():
        if not early: popw(99); s1check()
    def ca2():
        while len(hq) > 56 - 6: hq.pop(0)()
    conv(k, fill=cfill, pre_i=pre_i, before_b1=wh if s1 == 1 else None, after_b1=sg if s1 == 1 else None, before_b2=cb2, after_b2=ca2)
    q = Rec(k); gemm2_setup(q); poll_setup(q, 1, 32)
    q(f"s_lshl_b32 s99, {sCHT}, 8\ns_add_u32 s99, s99, {24*256}\ns_lshl_b32 s98, {sX}, 8\ns_add_u32 s98, s98, {24*256}")
    while len(hq) > 56 - d0: hq.pop(0)(); q.pop(5)
    q.flush()
    def hook(p):
        i = 14 * p[0] + p[1]
        if i == 1: stamp(k, 9, ts)
        if i == sg2: k.wait("ast"); k("s_barrier"); signal(k, "s98")
        if i == ck2 - 8: poll_issue(k, SWS, "s99")
        if i == ck2:
            stamp(k, 10, ts); poll_check(k, SWS, "s99"); k("s_barrier"); stamp(k, 11, ts)
            hq[1:1] = a_loads(k)
    gemm2(k, hq, hook)
    if ts:
        stamp(k, 12, ts); k.wait0(); stamp(k, 13, ts)
        k(f"""s_lshl2_add_u32 s66, s2, {sW}
        s_lshl_b32 s66, s66, 7
        s_add_u32 s66, s66, 0x40000
        v_lshlrev_b32 v1, 2, v0
        s_mov_b32 exec_hi, 0
        buffer_store_dword v229, v1, {SWS}, s66 offen""")
    if a1:
        k(f"""v_readlane_b32 s66, v229, {a0}
        v_readlane_b32 s67, v229, {a1}
        v_readlane_b32 s68, v229, 13
        s_sub_u32 s66, s67, s66
        s_min_u32 s66, s66, 5000
        s_lshl_b32 s66, s66, 3
        {n}_amp:
        s_memrealtime s[96:97]
        s_waitcnt lgkmcnt(0)
        s_sub_u32 s96, s96, s68
        s_cmp_lt_u32 s96, s66
        s_cbranch_scc1 {n}_amp""")
    fin(k)
    return build(HDR + ["; @launch grid=(256,1,1) block=(256,1,1) lds=163840"], [k])
```

```python
from gen import *
from g3 import *
g1.vXO, g1.vWO, g1.ACC, g1.GT = 108, 112, 80, 16
SDB = "s[92:95]"
S1C, S2C = 8, 40
def stamp(k, n, on, m=1):
    if on and (on == m or n in (0, 12, 13)): k(f"s_memrealtime s[96:97]\ns_memtime s[18:19]\ns_waitcnt lgkmcnt(0)\nv_writelane_b32 v{vTS}, s96, {n}\nv_writelane_b32 v{vTS}, s18, {n+16}")
def poll_setup(k, nl, target, w=sW):
    k(f"s_cmp_eq_u32 {w}, 0\ns_cselect_b32 s89, {nl}, 0" if w else f"s_mov_b32 s89, {nl}")
    k(f"""v_cmp_gt_u32 s[90:91], s89, v0
    v_lshlrev_b32 v{vPO}, 8, v0
    v_mov_b32 v{vPE}, {OOB}
    v_cndmask_b32 v{vPO}, v{vPE}, v{vPO}, s[90:91]
    v_cndmask_b32 v{vPE}, 0, {target}, s[90:91]""")
def poll_issue(k, srd, so): k.m(f"buffer_load_dword v{vPG}, v{vPO}, {srd}, {so} offen sc1", "poll")
def poll_check(k, srd, so):
    l, d = k.label("sp"), k.label("sd")
    k.wait("poll")
    k(f"""s_mov_b32 s89, 0x20000
    {l}:
    v_cmp_ne_u32 s[90:91], v{vPE}, v{vPG}
    s_sub_u32 s89, s89, 1
    s_cselect_b64 s[90:91], 0, s[90:91]
    s_cmp_eq_u64 s[90:91], 0
    s_cbranch_scc1 {d}
    {f"s_sleep {X['sl']}" if X.get('sl') else 's_nop 0'}
    buffer_load_dword v{vPG}, v{vPO}, {srd}, {so} offen sc1
    s_waitcnt vmcnt(0)
    s_branch {l}
    {d}:""")
def signal(k, so): k.m(f"buffer_atomic_add v{vS1}, v{vSO}, {SWS}, {so} offen sc1", "sig")
def sigregs(k):
    k(f"""v_cmp_eq_u32 vcc, 0, v0
    v_mov_b32 v{vS1}, {OOB}
    v_cndmask_b32 v{vSO}, v{vS1}, 0, vcc
    v_mov_b32 v{vS1}, 1""")
def sigoff(k, reg, base, w):
    k(f"s_add_u32 s98, {reg}, {base}\ns_lshl_b32 s98, s98, 8")
    if w: k(f"s_cmp_eq_u32 {w}, 0\ns_cselect_b32 s98, s98, {OOB}")
BAR = "s_waitcnt lgkmcnt(0)\ns_barrier"
def v3(ts=0, pf=1, hb=12, sg0=2, ck0=6, whw=5, wg=0, m1=8, nb=7, mb=7, cr=0, n0=4, dc=7, dh=7, sgb=0, ckb=2, pi2=19, sb2=3, sb3=3, pk=0, pkf=0, prc=0, prh=0, np_=3, pr2=1):
    k = G(NAME + "_kernel", vgpr=256, sgpr=102, accum=256); n = k.name
    prologue(k, pf, 1)
    isF = f"s_cmp_ge_u32 {sI}, 28\ns_cbranch_scc1 {n}"
    def srd2():
        srds(k); k("s_mov_b64 s[92:93], s[32:33]"); stamp(k, 0, ts)
    def g2pre(q):
        g2_setup(q); sigoff(q, sX, S2C, sW8)
    k(f"s_mov_b32 s94, 256\ns_mov_b32 s95, 0x20000\ns_cmp_eq_u32 {sG}, 0\ns_cbranch_scc1 {n}_c0")
    vm0 = list(k.vm)
    if prh: k(f"s_setprio {prh}")
    k(f"{isF}_fh")
    g1_addr(k); kaddr(k); srd2()
    q = Rec(k); kload(q, 0); sigregs(q); w2_setup(q); q(f"s_mov_b32 {sKD}, {L_KD}"); kaddr2(q)
    for i, f in enumerate(sum((g1_dma(k, st) for st in range(4)), [])):
        if i == hb: k("s_barrier")
        if i == 24: k.wait("g0"); stamp(k, 1, ts, 2); k("s_barrier"); stamp(k, 1, ts)
        f()
        if i >= 8: q.pop(2)
    q.flush()
    wqH = w2_loads(k, 0, 17); wqH0 = list(wqH)
    bg = Rec(k); bg.wait("kp")
    rows = kA(Rec(k) if X.get("noka") else bg, pk); cv_setup(bg); cv_x(bg, 0, 4096)
    for b in range(1, 10):
        stamp(k, b + 1, ts, 2)
        k.wait(f"g{b}")
        stamp(k, b + 1, ts, 3)
        if b == ck0: stamp(k, 2, ts)
        if b == 8: bg.flush(); stamp(k, 4, ts)
        k(BAR if b == 9 else "s_barrier")
        if b == ck0: stamp(k, 3, ts)
        it = g1_dma(k, b + 3) if b <= 6 else []
        if X.get("nodma"): it = it[:X["nodma"]-1]
        if b == ck0: it.append(lambda: uload(k))
        if ck0 <= b < 9 and b > 6: it += [wqH.pop(0) for _ in range(whw)]
        if b == 8: kB(bg, rows)
        per = -(-len(bg.q) // max(1, 8 - b) // max(1, len(it)))
        for f in it: f(); bg.pop(per)
        if not it: bg.pop(per)
        if b == 8: bg.flush()
    assert len(wqH) >= 17
    kC(k, lambda j: k("s_barrier") if j == mb else None)
    cv_u(k)
    while len(wqH) > max(cr, 2): wqH.pop(0)()
    k(f"{n}_hc:")
    preH = len(wqH0) - len(wqH)
    while len(wqH) > cr: wqH.pop(0)()
    stamp(k, 5, ts); k(BAR); stamp(k, 6, ts)
    cv_main(k, lambda i, m: wqH.pop(0)() if wqH and (36*i + m) % 7 == 6 else None)
    while wqH: wqH.pop(0)()
    stamp(k, 7, ts); k(BAR); stamp(k, 8, ts)
    if pr2: k(f"s_setprio {pr2}")
    hq = h_loads(k)
    cv_fin(k, lambda: [hq.pop(0)() for _ in range(n0)])
    q = Rec(k); g2h_setup(q)
    while len(hq) > 28 - dh: hq.pop(0)(); q.pop(2)
    q.pop(max(0, len(q.q) - 6))
    if pr2: k("s_setprio 0")
    T5 = (0, 1, 7, 9, 14, 16, 21, 23, 28, 29, 30)
    def hookh(i):
        if i in T5: stamp(k, T5.index(i) + 1, ts, 5)
        if i == 103: stamp(k, 10, ts, 5)
        if i in (1, 21 + sb3, 103): stamp(k, 9 + (1, 21 + sb3, 103).index(i), ts)
        if i == 7 * sgb: k.wait("ast")
    gemm2h(k, hq, hookh, q, sb2, sb3)
    k(f"s_branch {n}_{'fin' if ts else 'end'}\n{n}_fh:")
    k.vm = list(vm0)
    side_addr(k); srd2(); side_load(k); sigregs(k); side_addr2(k); poll_setup(k, 1, 1); w2_setup(k); sigoff(k, sX, 0, sW)
    k(f"s_mov_b32 {sKD}, 0\ns_mov_b32 {sCNT}, {KPAIR}")
    k.wait0(); k("s_barrier"); stamp(k, 1, ts)
    side_do(k); poll_issue(k, SDB, "0"); cv_setup(k); cv_x(k, 40960, 4096)
    k.wait("sst"); poll_check(k, SDB, "0"); k("s_barrier"); signal(k, "s98")
    poll_setup(k, 8, 32, None); k("s_barrier\ns_barrier")
    stamp(k, 2, ts)
    if X.get("fsl"): k(f"s_sleep {X['fsl']}")
    poll_issue(k, SWS, "0"); poll_check(k, SWS, "0")
    stamp(k, 3, ts); uload(k, 168)
    k.wait("ul"); k.vm = []; stamp(k, 4, ts)
    k(f"{n}_f1:")
    cv_u(k, 168); k(BAR)
    k(f"s_add_u32 {sPAIR}, {sPAIR}, 1"); uload(k, 168)
    w2_setup(k); fq = wqH0[:preH]
    cv_main(k, lambda i, m: fq.pop(0)() if fq and m % 4 == 3 else None); assert not fq
    k(BAR); k.wait("ul"); cv_fin(k); k.vm = []
    for i in range(4, 8): k(f"v_add_u32 v{i}, {sCNT}, v{i}")
    k(f"s_cmp_eq_u32 {sCNT}, {KPAIR}\ns_mov_b32 {sCNT}, {L_KD - KPAIR}\ns_cbranch_scc1 {n}_f1")
    cv_x(k, 0, 4096); cv_u(k, 168)
    k(f"s_branch {n}_hc\n{n}_c0:")
    k.vm = list(vm0)
    if prc: k(f"s_setprio {prc}")
    def cpre():
        sigregs(k); w2_setup(k); k(f"s_add_u32 s99, {sTK}, {S1C}\ns_lshl_b32 s99, s99, 8")
    k(f"{isF}_fc")
    r = Rec(k, 160); side_addr(r); r.flush()
    k(f"""s_or_b32 s66, s2, {sW}
    s_cmp_eq_u32 s66, 0
    s_cselect_b32 s98, 0, {OOB}
    v_lshlrev_b32 v{vPO}, 8, v0
    v_mov_b32 v{vPE}, 0""")
    srd2()
    k.m(f"buffer_store_dword v{vPE}, v{vPO}, {SWS}, s98 offen sc1", "zero")
    side_load(r); r.flush(); cpre()
    gemm1_setup(k); gemm1_sel(k); gemm1_setup2(k); side_addr2(r); r.flush(); poll_setup(k, 1, 1)
    k.wait("zero")
    k.m(f"buffer_store_dword v{vS1}, v{vSO}, {SDB}, s98 offen sc1", "sig")
    sigoff(k, sX, 0, sW)
    k.wait("side"); k("s_barrier"); stamp(k, 1, ts, 2); side_do(r); r.flush(); stamp(k, 1, ts, 3)
    if sg0 == 1: poll_issue(k, SDB, "0")
    r = Rec(k)
    def pre_b(st):
        stamp(k, st + 2, ts, 3)
        if st + 1 == sg0: r.flush(); k.wait("sst"); poll_check(k, SDB, "0")
        if st + 1 == ck0: r.flush(); poll_check(k, SWS, "0")
    def post_b(st):
        stamp(k, st + 2, ts, 2)
        if st in (2, 5, 6, 7): stamp(k, st + 2, ts, 4)
        if st == 0: stamp(k, 1, ts)
        if st == 4: stamp(k, 2, ts)
        if st == 8: stamp(k, 3, ts)
        if st + 2 == sg0: poll_issue(r, SDB, "0")
        if st + 1 == sg0: signal(k, "s98"); poll_setup(r, 8, 32)
        if st + 2 == ck0: poll_issue(r, SWS, "0")
        if st + 1 == ck0: stats_load(r); poll_setup(r, 1, 28); sigoff(r, "s81", S1C, None)
    gemm1c(k, pre_b, post_b, lambda g, i: r.pop())
    assert not r.q
    stamp(k, 4, ts)
    wqC = w2_loads(k, 0, 9); wqC0 = list(wqC)
    def gf(i):
        if i == nb: k("s_barrier")
        for _ in range(wg): wqC.pop(0)()
    gelu(k, gf)
    assert len(wqC) >= 9
    preC = len(wqC0) - len(wqC); vm = list(k.vm)
    k(f"s_branch {n}_cc\n{n}_fc:")
    k.vm = list(vm0)
    kaddr(k); srd2(); kload(k, 0); kload(k, 1, 80); kload(k, 2, 86); cpre()
    k(f"s_mov_b32 {sKD}, 0\ns_mov_b32 {sCNT}, 3\ns_mov_b32 s98, {OOB}\ns_mov_b32 s81, {KPAIR}")
    kaddr2(k); poll_setup(k, 1, 28); k.wait0(); k("s_barrier"); stamp(k, 1, ts)
    k(f"{n}_f2:")
    kA(k, pkf); k("s_barrier"); kB(k, rows); k(BAR); kC(k)
    for i in range(6): k(f"v_mov_b32 v{KP+i}, v{80+i}\nv_mov_b32 v{80+i}, v{86+i}")
    k("s_waitcnt lgkmcnt(0)")
    for i in range(55, 58): k(f"v_add_u32 v{i}, s81, v{i}")
    k(f"s_mov_b32 s81, {L_KD - KPAIR}\ns_sub_u32 {sCNT}, {sCNT}, 1\ns_cmp_lg_u32 {sCNT}, 0\ns_cbranch_scc1 {n}_f2")
    for i in (2, 3, 4): stamp(k, i, ts)
    for f in wqC0[:preC]: f()
    k("s_barrier\ns_barrier")
    k.vm = vm
    k(f"{n}_cc:")
    stamp(k, 5, ts)
    for _ in range(m1): wqC.pop(0)()
    k.wait("hst"); signal(k, "s98"); stamp(k, 6, ts)
    q = Rec(k); g2c_setup(q); sigoff(q, sX, S2C, sW)
    while wqC: wqC.pop(0)(); q.pop(2)
    q.flush()
    poll_issue(k, SWS, "s99"); poll_check(k, SWS, "s99")
    if prc: k("s_setprio 0")
    stamp(k, 7, ts); k("s_barrier"); stamp(k, 8, ts)
    hq = h_loads(k)
    for i in range(dc): hq.pop(0)()
    poll_setup(k, 1, 32)
    k(f"s_add_u32 s99, {sCHT}, {S2C}\ns_lshl_b32 s99, s99, 8")
    def hookc(i):
        if i in T5: stamp(k, T5.index(i) + 1, ts, 5)
        if i == 1: stamp(k, 9, ts)
        if i == 100 + sgb: signal(k, "s98")
        if i == pi2: poll_issue(k, SWS, "s99")
        if i == (23 if ckb == 2 else 28): stamp(k, 10, ts); poll_check(k, SWS, "s99"); stamp(k, 11, ts)
    gemm2c(k, hq, hookc, ckb)
    k(f"{n}_fin:")
    if ts:
        stamp(k, 12, ts); k.wait0(); stamp(k, 13, ts)
        k(f"""s_lshl3_add_u32 s66, s2, {sW8}
        s_lshl_b32 s66, s66, 7
        s_add_u32 s66, s66, 0x40000
        v_lshlrev_b32 v1, 2, v0
        s_mov_b32 exec_hi, 0
        buffer_store_dword v{vTS}, v1, {SWS}, s66 offen""")
    fin(k)
    return build(HDR + ["; @launch grid=(256,1,1) block=(512,1,1) lds=163840"], [k])
```

```python
import sys
from g1 import *
from asmlib import build
import haz
NAME = "gated_mix__ssm_conv_s4d__mixer_channel_mlp__prompt"
HDR = [l.rstrip("\n") for l in open(f"cdna_kernels/{NAME}.s.ref") if l.startswith(";") and "@launch" not in l and "Override" not in l and "Harness parses" not in l]
def fin(k):
    k(f"{k.name}_end:\ns_endpgm")
    k.lines = haz.fix(k.lines, "-v" in sys.argv); return k
def newk(n): return G(n, vgpr=512, sgpr=102, accum=256)
if __name__ == "__main__":
    mode = sys.argv[1]; out = sys.argv[2]; kw = {a.split("=")[0]: int(a.split("=")[1]) for a in sys.argv[3:] if "=" in a}
    for a in list(kw):
        if a.startswith("x"): X[a[1:]] = kw.pop(a)
    if mode == "single":
        from single import single
        s = single(**kw)
    else:
        from v3 import v3
        s = v3(**kw)
    open(out, "w").write(s)
```

```python
from gen import *
from g3 import *
g1.vXO, g1.vWO, g1.ACC, g1.GT = 108, 112, 80, 16
SDB = "s[92:95]"
S1C, S2C = 512, 768
def stamp(k, n, on, m=1):
    if on and (on == m or n in (0, 12, 13)): k(f"s_memrealtime s[96:97]\ns_memtime s[18:19]\ns_waitcnt lgkmcnt(0)\nv_writelane_b32 v{vTS}, s96, {n}\nv_writelane_b32 v{vTS}, s18, {n+16}")
def poll_setup(k, nl, target, w=sW, sh=8):
    k(f"s_cmp_eq_u32 {w}, 0\ns_cselect_b32 s89, {nl}, 0" if w else f"s_mov_b32 s89, {nl}")
    k(f"""v_cmp_gt_u32 s[90:91], s89, v0
    v_lshlrev_b32 v{vPO}, {sh}, v0
    v_mov_b32 v{vPE}, {OOB}
    v_cndmask_b32 v{vPO}, v{vPE}, v{vPO}, s[90:91]
    v_cndmask_b32 v{vPE}, 0, {target}, s[90:91]""")
def poll_issue(k, srd, so): k.m(f"buffer_load_dword v{vPG}, v{vPO}, {srd}, {so} offen sc1", "poll")
def poll_check(k, srd, so):
    l, d = k.label("sp"), k.label("sd")
    k.wait("poll")
    k(f"""s_mov_b32 s89, 0x20000
    {l}:
    v_cmp_ne_u32 s[90:91], v{vPE}, v{vPG}
    s_sub_u32 s89, s89, 1
    s_cselect_b64 s[90:91], 0, s[90:91]
    s_cmp_eq_u64 s[90:91], 0
    s_cbranch_scc1 {d}
    {f"s_sleep {X['sl']}" if X.get('sl') else 's_nop 0'}
    buffer_load_dword v{vPG}, v{vPO}, {srd}, {so} offen sc1
    s_waitcnt vmcnt(0)
    s_branch {l}
    {d}:""")
def signal(k, so): k.m(f"buffer_atomic_add v{vS1}, v{vSO}, {SWS}, {so} offen sc1", "sig")
def sigregs(k, r):
    k(f"""v_cmp_gt_u32 s[90:91], {r}, v0
    v_mov_b32 v{vS1}, {OOB}
    v_lshlrev_b32 v{vSO}, 8, v0
    v_cndmask_b32 v{vSO}, v{vS1}, v{vSO}, s[90:91]
    v_mov_b32 v{vS1}, 1""")
def lineoff(k, d, reg, r, base, sel=None):
    k(f"s_mul_i32 {d}, {reg}, {r}\ns_add_u32 {d}, {d}, {base}")
    if sel and r > 1: k(f"s_and_b32 s89, {sel}, {r-1}\ns_add_u32 {d}, {d}, s89")
    k(f"s_lshl_b32 {d}, {d}, 8")
def sigoff(k, reg, r, base, w):
    lineoff(k, "s98", reg, r, base)
    if w: k(f"s_cmp_eq_u32 {w}, 0\ns_cselect_b32 s98, s98, {OOB}")
BAR = "s_waitcnt lgkmcnt(0)\ns_barrier"
def v3(ts=0, pf=1, hb=12, sg0=2, ck0=6, whw=5, wg=0, m1=8, nb=7, mb=7, cr=0, n0=4, dc=7, dh=7, sgb=0, ckb=2, pi2=19, sb2=3, sb3=3, pk=0, pkf=0, prc=0, prh=0, np_=3, pr2=1, r0=8, r1=8, r2=8):
    k = G(NAME + "_kernel", vgpr=256, sgpr=102, accum=256); n = k.name
    prologue(k, pf, 1)
    isF = f"s_cmp_ge_u32 {sI}, 28\ns_cbranch_scc1 {n}"
    def srd2():
        srds(k); k("s_mov_b64 s[92:93], s[32:33]"); stamp(k, 0, ts)
    def p0(q, w): poll_setup(q, 8, 32, w, 8 + r0.bit_length() - 1); q(f"s_and_b32 s89, {sX}, {r0-1}\ns_lshl_b32 s89, s89, 8\nv_add_u32 v{vPO}, s89, v{vPO}")
    k(f"s_mov_b32 s94, 256\ns_mov_b32 s95, 0x20000\ns_cmp_eq_u32 {sG}, 0\ns_cbranch_scc1 {n}_c0")
    vm0 = list(k.vm)
    if prh: k(f"s_setprio {prh}")
    k(f"{isF}_fh")
    g1_addr(k); kaddr(k); srd2()
    q = Rec(k); kload(q, 0); w2_setup(q); q(f"s_mov_b32 {sKD}, {L_KD}"); kaddr2(q)
    for i, f in enumerate(sum((g1_dma(k, st) for st in range(4)), [])):
        if i == hb: k("s_barrier")
        if i == 24: k.wait("g0"); stamp(k, 1, ts, 2); k("s_barrier"); stamp(k, 1, ts)
        f()
        if i >= 8: q.pop(2)
    q.flush()
    wqH = w2_loads(k, 0, 17); wqH0 = list(wqH)
    bg = Rec(k); bg.wait("kp")
    rows = kA(Rec(k) if X.get("noka") else bg, pk); cv_setup(bg); cv_x(bg, 0, 4096)
    for b in range(1, 10):
        stamp(k, b + 1, ts, 2)
        k.wait(f"g{b}")
        stamp(k, b + 1, ts, 3)
        if b == ck0: stamp(k, 2, ts)
        if b == 8: bg.flush(); stamp(k, 4, ts)
        k(BAR if b == 9 else "s_barrier")
        if b == ck0: stamp(k, 3, ts)
        it = g1_dma(k, b + 3) if b <= 6 else []
        if X.get("nodma"): it = it[:X["nodma"]-1]
        if b == ck0: it.append(lambda: uload(k))
        if ck0 <= b < 9 and b > 6: it += [wqH.pop(0) for _ in range(whw)]
        if b == 8: kB(bg, rows)
        per = -(-len(bg.q) // max(1, 8 - b) // max(1, len(it)))
        for f in it: f(); bg.pop(per)
        if not it: bg.pop(per)
        if b == 8: bg.flush()
    assert len(wqH) >= 17
    kC(k, lambda j: k("s_barrier") if j == mb else None)
    cv_u(k)
    while len(wqH) > max(cr, 2): wqH.pop(0)()
    k(f"{n}_hc:")
    preH = len(wqH0) - len(wqH)
    while len(wqH) > cr: wqH.pop(0)()
    stamp(k, 5, ts); k(BAR); stamp(k, 6, ts)
    cv_main(k, lambda i, m: wqH.pop(0)() if wqH and (36*i + m) % 7 == 6 else None)
    while wqH: wqH.pop(0)()
    stamp(k, 7, ts); k(BAR); stamp(k, 8, ts)
    if pr2: k(f"s_setprio {pr2}")
    hq = h_loads(k)
    cv_fin(k, lambda: [hq.pop(0)() for _ in range(n0)])
    q = Rec(k); g2h_setup(q)
    while len(hq) > 28 - dh: hq.pop(0)(); q.pop(2)
    q.pop(max(0, len(q.q) - 6))
    if pr2: k("s_setprio 0")
    T5 = (0, 1, 7, 9, 14, 16, 21, 23, 28, 29, 30)
    def hookh(i):
        if i in T5: stamp(k, T5.index(i) + 1, ts, 5)
        if i == 103: stamp(k, 10, ts, 5)
        if i in (1, 21 + sb3, 103): stamp(k, 9 + (1, 21 + sb3, 103).index(i), ts)
        if i == 7 * sgb: k.wait("ast")
    gemm2h(k, hq, hookh, q, sb2, sb3)
    k(f"s_branch {n}_{'fin' if ts else 'end'}\n{n}_fh:")
    k.vm = list(vm0)
    side_addr(k); srd2(); side_load(k); sigregs(k, r0); side_addr2(k); poll_setup(k, 1, 1); w2_setup(k); sigoff(k, sX, r0, 0, sW)
    k(f"s_mov_b32 {sKD}, 0\ns_mov_b32 {sCNT}, {KPAIR}")
    k.wait0(); k("s_barrier"); stamp(k, 1, ts)
    side_do(k); poll_issue(k, SDB, "0"); cv_setup(k); cv_x(k, 40960, 4096)
    k.wait("sst"); poll_check(k, SDB, "0"); k("s_barrier"); signal(k, "s98")
    p0(k, None); k("s_barrier\ns_barrier")
    stamp(k, 2, ts)
    if X.get("fsl"): k(f"s_sleep {X['fsl']}")
    poll_issue(k, SWS, "0"); poll_check(k, SWS, "0")
    stamp(k, 3, ts); uload(k, 168)
    k.wait("ul"); k.vm = []; stamp(k, 4, ts)
    k(f"{n}_f1:")
    cv_u(k, 168); k(BAR)
    k(f"s_add_u32 {sPAIR}, {sPAIR}, 1"); uload(k, 168)
    w2_setup(k); fq = wqH0[:preH]
    cv_main(k, lambda i, m: fq.pop(0)() if fq and m % 4 == 3 else None); assert not fq
    k(BAR); k.wait("ul"); cv_fin(k); k.vm = []
    for i in range(4, 8): k(f"v_add_u32 v{i}, {sCNT}, v{i}")
    k(f"s_cmp_eq_u32 {sCNT}, {KPAIR}\ns_mov_b32 {sCNT}, {L_KD - KPAIR}\ns_cbranch_scc1 {n}_f1")
    cv_x(k, 0, 4096); cv_u(k, 168)
    k(f"s_branch {n}_hc\n{n}_c0:")
    k.vm = list(vm0)
    if prc: k(f"s_setprio {prc}")
    def cpre():
        sigregs(k, r0); w2_setup(k); lineoff(k, "s99", sTK, r1, S1C, sCHT)
    k(f"{isF}_fc")
    r = Rec(k, 160); side_addr(r); r.flush()
    k(f"""s_or_b32 s66, s2, {sW}
    s_cmp_eq_u32 s66, 0
    s_cselect_b32 s98, 0, {OOB}
    v_lshlrev_b32 v{vPO}, 8, v0
    v_mov_b32 v{vPE}, 0""")
    srd2()
    k(f"s_cmp_lg_u32 s98, 0\ns_cbranch_scc1 {n}_nz")
    for l in list(range(S1C, S1C + 32*r1, 64)) + list(range(S2C, S2C + 8*r2, 64)):
        k(f"s_mov_b32 s66, {l*256}"); k.m(f"buffer_store_dword v{vPE}, v{vPO}, {SWS}, s66 offen sc1", "~z")
    k(f"{n}_nz:")
    k.m(f"buffer_store_dword v{vPE}, v{vPO}, {SWS}, s98 offen sc1", "zero")
    side_load(r); r.flush(); cpre()
    gemm1_setup(k); gemm1_sel(k); gemm1_setup2(k); side_addr2(r); r.flush(); poll_setup(k, 1, 1)
    k.wait("zero")
    k.m(f"buffer_store_dword v{vS1}, v{vSO}, {SDB}, s98 offen sc1", "sig")
    sigoff(k, sX, r0, 0, sW)
    k.wait("side"); k("s_barrier"); stamp(k, 1, ts, 2); side_do(r); r.flush(); stamp(k, 1, ts, 3)
    if sg0 == 1: poll_issue(k, SDB, "0")
    r = Rec(k)
    def pre_b(st):
        stamp(k, st + 2, ts, 3)
        if st + 1 == sg0: r.flush(); k.wait("sst"); poll_check(k, SDB, "0")
        if st + 1 == ck0: r.flush(); poll_check(k, SWS, "0")
    def post_b(st):
        stamp(k, st + 2, ts, 2)
        if st in (2, 5, 6, 7): stamp(k, st + 2, ts, 4)
        if st == 0: stamp(k, 1, ts)
        if st == 4: stamp(k, 2, ts)
        if st == 8: stamp(k, 3, ts)
        if st + 2 == sg0: poll_issue(r, SDB, "0")
        if st + 1 == sg0: signal(k, "s98"); p0(r, sW)
        if st + 2 == ck0: poll_issue(r, SWS, "0")
        if st + 1 == ck0: stats_load(r); poll_setup(r, 1, 28); sigoff(r, "s81", r1, S1C, None); sigregs(r, r1)
    gemm1c(k, pre_b, post_b, lambda g, i: r.pop())
    assert not r.q
    stamp(k, 4, ts)
    wqC = w2_loads(k, 0, 9); wqC0 = list(wqC)
    def gf(i):
        if i == nb: k("s_barrier")
        for _ in range(wg): wqC.pop(0)()
    gelu(k, gf)
    assert len(wqC) >= 9
    preC = len(wqC0) - len(wqC); vm = list(k.vm)
    k(f"s_branch {n}_cc\n{n}_fc:")
    k.vm = list(vm0)
    kaddr(k); srd2(); kload(k, 0); kload(k, 1, 80); kload(k, 2, 86); cpre()
    k(f"s_mov_b32 {sKD}, 0\ns_mov_b32 {sCNT}, 3\ns_mov_b32 s98, {OOB}\ns_mov_b32 s81, {KPAIR}")
    kaddr2(k); poll_setup(k, 1, 28); k.wait0(); k("s_barrier"); stamp(k, 1, ts)
    k(f"{n}_f2:")
    kA(k, pkf); k("s_barrier"); kB(k, rows); k(BAR); kC(k)
    for i in range(6): k(f"v_mov_b32 v{KP+i}, v{80+i}\nv_mov_b32 v{80+i}, v{86+i}")
    k("s_waitcnt lgkmcnt(0)")
    for i in range(55, 58): k(f"v_add_u32 v{i}, s81, v{i}")
    k(f"s_mov_b32 s81, {L_KD - KPAIR}\ns_sub_u32 {sCNT}, {sCNT}, 1\ns_cmp_lg_u32 {sCNT}, 0\ns_cbranch_scc1 {n}_f2")
    for i in (2, 3, 4): stamp(k, i, ts)
    for f in wqC0[:preC]: f()
    k("s_barrier\ns_barrier")
    k.vm = vm
    k(f"{n}_cc:")
    stamp(k, 5, ts)
    for _ in range(m1): wqC.pop(0)()
    k.wait("hst"); signal(k, "s98"); stamp(k, 6, ts)
    q = Rec(k); g2c_setup(q); sigoff(q, sX, r2, S2C, sW)
    while wqC: wqC.pop(0)(); q.pop(2)
    q.flush()
    poll_issue(k, SWS, "s99"); poll_check(k, SWS, "s99")
    if prc: k("s_setprio 0")
    stamp(k, 7, ts); k("s_barrier"); stamp(k, 8, ts)
    hq = h_loads(k)
    for i in range(dc): hq.pop(0)()
    poll_setup(k, 1, 32)
    lineoff(k, "s99", sCHT, r2, S2C, sTK); sigregs(k, r2)
    def hookc(i):
        if i in T5: stamp(k, T5.index(i) + 1, ts, 5)
        if i == 1: stamp(k, 9, ts)
        if i == 100 + sgb: signal(k, "s98")
        if i == pi2: poll_issue(k, SWS, "s99")
        if i == (23 if ckb == 2 else 28): stamp(k, 10, ts); poll_check(k, SWS, "s99"); stamp(k, 11, ts)
    gemm2c(k, hq, hookc, ckb)
    k(f"{n}_fin:")
    if ts:
        stamp(k, 12, ts); k.wait0(); stamp(k, 13, ts)
        k(f"""s_lshl3_add_u32 s66, s2, {sW8}
        s_lshl_b32 s66, s66, 7
        s_add_u32 s66, s66, 0x40000
        v_lshlrev_b32 v1, 2, v0
        s_mov_b32 exec_hi, 0
        buffer_store_dword v{vTS}, v1, {SWS}, s66 offen""")
    fin(k)
    return build(HDR + ["; @launch grid=(256,1,1) block=(512,1,1) lds=163840"], [k])
```

```python
from gen import *
from g3 import *
g1.vXO, g1.vWO, g1.ACC, g1.GT = 108, 112, 80, 16
SDB = "s[92:95]"
S1C, S2C = 512, 768
def stamp(k, n, on, m=1):
    if on and (on == m or n in (0, 12, 13)): k(f"s_memrealtime s[96:97]\ns_memtime s[18:19]\ns_waitcnt lgkmcnt(0)\nv_writelane_b32 v{vTS}, s96, {n}\nv_writelane_b32 v{vTS}, s18, {n+16}")
def poll_setup(k, nl, target, w=sW, sh=8):
    k(f"s_cmp_eq_u32 {w}, 0\ns_cselect_b32 s89, {nl}, 0" if w else f"s_mov_b32 s89, {nl}")
    k(f"""v_cmp_gt_u32 s[90:91], s89, v0
    v_lshlrev_b32 v{vPO}, {sh}, v0
    v_mov_b32 v{vPE}, {OOB}
    v_cndmask_b32 v{vPO}, v{vPE}, v{vPO}, s[90:91]
    v_cndmask_b32 v{vPE}, 0, {target}, s[90:91]""")
def poll_issue(k, srd, so): k.m(f"buffer_load_dword v{vPG}, v{vPO}, {srd}, {so} offen sc1", "poll")
def poll_check(k, srd, so):
    l, d = k.label("sp"), k.label("sd")
    k.wait("poll")
    k(f"""s_mov_b32 s89, 0x20000
    {l}:
    v_cmp_ne_u32 s[90:91], v{vPE}, v{vPG}
    s_sub_u32 s89, s89, 1
    s_cselect_b64 s[90:91], 0, s[90:91]
    s_cmp_eq_u64 s[90:91], 0
    s_cbranch_scc1 {d}
    {f"s_sleep {X['sl']}" if X.get('sl') else 's_nop 0'}
    buffer_load_dword v{vPG}, v{vPO}, {srd}, {so} offen sc1
    s_waitcnt vmcnt(0)
    s_branch {l}
    {d}:""")
def signal(k, so): k.m(f"buffer_atomic_add v{vS1}, v{vSO}, {SWS}, {so} offen sc1", "sig")
def sigregs(k, r):
    k(f"""v_cmp_gt_u32 s[90:91], {r}, v0
    v_mov_b32 v{vS1}, {OOB}
    v_lshlrev_b32 v{vSO}, 8, v0
    v_cndmask_b32 v{vSO}, v{vS1}, v{vSO}, s[90:91]
    v_mov_b32 v{vS1}, 1""")
def lineoff(k, d, reg, r, base, sel=None):
    k(f"s_mul_i32 {d}, {reg}, {r}\ns_add_u32 {d}, {d}, {base}")
    if sel and r > 1: k(f"s_and_b32 s89, {sel}, {r-1}\ns_add_u32 {d}, {d}, s89")
    k(f"s_lshl_b32 {d}, {d}, 8")
def sigoff(k, reg, r, base, w):
    lineoff(k, "s98", reg, r, base)
    if w: k(f"s_cmp_eq_u32 {w}, 0\ns_cselect_b32 s98, s98, {OOB}")
BAR = "s_waitcnt lgkmcnt(0)\ns_barrier"
def v3(ts=0, pf=1, hb=12, sg0=2, ck0=6, whw=5, wg=0, m1=8, nb=7, mb=7, cr=0, n0=4, dc=7, dh=7, sgb=0, ckb=2, pi2=19, sb2=3, sb3=3, pk=0, pkf=0, prc=0, prh=0, np_=3, pr2=1, r0=8, r1=8, r2=8):
    k = G(NAME + "_kernel", vgpr=256, sgpr=102, accum=256); n = k.name
    prologue(k, pf, 1)
    isF = f"s_cmp_ge_u32 {sI}, 28\ns_cbranch_scc1 {n}"
    def srd2():
        srds(k); k("s_mov_b64 s[92:93], s[32:33]"); stamp(k, 0, ts)
    def p0(q, w): poll_setup(q, 8, 32, w, 8 + r0.bit_length() - 1); q(f"s_and_b32 s89, s2, {r0-1}\ns_lshl_b32 s89, s89, 8\nv_add_u32 v{vPO}, s89, v{vPO}")
    k(f"s_mov_b32 s94, 256\ns_mov_b32 s95, 0x20000\ns_cmp_eq_u32 {sG}, 0\ns_cbranch_scc1 {n}_c0")
    vm0 = list(k.vm)
    if prh: k(f"s_setprio {prh}")
    k(f"{isF}_fh")
    g1_addr(k); kaddr(k); srd2()
    q = Rec(k); kload(q, 0); w2_setup(q); q(f"s_mov_b32 {sKD}, {L_KD}"); kaddr2(q)
    for i, f in enumerate(sum((g1_dma(k, st) for st in range(4)), [])):
        if i == hb: k("s_barrier")
        if i == 24: k.wait("g0"); stamp(k, 1, ts, 2); k("s_barrier"); stamp(k, 1, ts)
        f()
        if i >= 8: q.pop(2)
    q.flush()
    wqH = w2_loads(k, 0, 17); wqH0 = list(wqH)
    bg = Rec(k); bg.wait("kp")
    rows = kA(Rec(k) if X.get("noka") else bg, pk); cv_setup(bg); cv_x(bg, 0, 4096)
    for b in range(1, 10):
        stamp(k, b + 1, ts, 2)
        k.wait(f"g{b}")
        stamp(k, b + 1, ts, 3)
        if b == ck0: stamp(k, 2, ts)
        if b == 8: bg.flush(); stamp(k, 4, ts)
        k(BAR if b == 9 else "s_barrier")
        if b == ck0: stamp(k, 3, ts)
        it = g1_dma(k, b + 3) if b <= 6 else []
        if X.get("nodma"): it = it[:X["nodma"]-1]
        if b == ck0: it.append(lambda: uload(k))
        if ck0 <= b < 9 and b > 6: it += [wqH.pop(0) for _ in range(whw)]
        if b == 8: kB(bg, rows)
        per = -(-len(bg.q) // max(1, 8 - b) // max(1, len(it)))
        for f in it: f(); bg.pop(per)
        if not it: bg.pop(per)
        if b == 8: bg.flush()
    assert len(wqH) >= 17
    kC(k, lambda j: k("s_barrier") if j == mb else None)
    cv_u(k)
    while len(wqH) > max(cr, 2): wqH.pop(0)()
    k(f"{n}_hc:")
    preH = len(wqH0) - len(wqH)
    while len(wqH) > cr: wqH.pop(0)()
    stamp(k, 5, ts); k(BAR); stamp(k, 6, ts)
    cv_main(k, lambda i, m: wqH.pop(0)() if wqH and (36*i + m) % 7 == 6 else None)
    while wqH: wqH.pop(0)()
    stamp(k, 7, ts); k(BAR); stamp(k, 8, ts)
    if pr2: k(f"s_setprio {pr2}")
    hq = h_loads(k)
    cv_fin(k, lambda: [hq.pop(0)() for _ in range(n0)])
    q = Rec(k); g2h_setup(q)
    while len(hq) > 28 - dh: hq.pop(0)(); q.pop(2)
    q.pop(max(0, len(q.q) - 6))
    if pr2: k("s_setprio 0")
    T5 = (0, 1, 7, 9, 14, 16, 21, 23, 28, 29, 30)
    def hookh(i):
        if i in T5: stamp(k, T5.index(i) + 1, ts, 5)
        if i == 103: stamp(k, 10, ts, 5)
        if i in (1, 21 + sb3, 103): stamp(k, 9 + (1, 21 + sb3, 103).index(i), ts)
        if i == 7 * sgb: k.wait("ast")
    gemm2h(k, hq, hookh, q, sb2, sb3)
    k(f"s_branch {n}_{'fin' if ts else 'end'}\n{n}_fh:")
    k.vm = list(vm0)
    side_addr(k); srd2(); side_load(k); sigregs(k, r0); side_addr2(k); poll_setup(k, 1, 1); w2_setup(k); sigoff(k, sX, r0, 0, sW)
    k(f"s_mov_b32 {sKD}, 0\ns_mov_b32 {sCNT}, {KPAIR}")
    k.wait0(); k("s_barrier"); stamp(k, 1, ts)
    side_do(k); poll_issue(k, SDB, "0"); cv_setup(k); cv_x(k, 40960, 4096)
    k.wait("sst"); poll_check(k, SDB, "0"); k("s_barrier"); signal(k, "s98")
    p0(k, None); k("s_barrier\ns_barrier")
    stamp(k, 2, ts)
    if X.get("fsl"): k(f"s_sleep {X['fsl']}")
    poll_issue(k, SWS, "0"); poll_check(k, SWS, "0")
    stamp(k, 3, ts); uload(k, 168)
    k.wait("ul"); k.vm = []; stamp(k, 4, ts)
    k(f"{n}_f1:")
    cv_u(k, 168); k(BAR)
    k(f"s_add_u32 {sPAIR}, {sPAIR}, 1"); uload(k, 168)
    w2_setup(k); fq = wqH0[:preH]
    cv_main(k, lambda i, m: fq.pop(0)() if fq and m % 4 == 3 else None); assert not fq
    k(BAR); k.wait("ul"); cv_fin(k); k.vm = []
    for i in range(4, 8): k(f"v_add_u32 v{i}, {sCNT}, v{i}")
    k(f"s_cmp_eq_u32 {sCNT}, {KPAIR}\ns_mov_b32 {sCNT}, {L_KD - KPAIR}\ns_cbranch_scc1 {n}_f1")
    cv_x(k, 0, 4096); cv_u(k, 168)
    k(f"s_branch {n}_hc\n{n}_c0:")
    k.vm = list(vm0)
    if prc: k(f"s_setprio {prc}")
    def cpre():
        sigregs(k, r0); w2_setup(k); lineoff(k, "s99", sTK, r1, S1C, sCHT)
    k(f"{isF}_fc")
    r = Rec(k, 160); side_addr(r); r.flush()
    k(f"""s_or_b32 s66, s2, {sW}
    s_cmp_eq_u32 s66, 0
    s_cselect_b32 s98, 0, {OOB}
    v_lshlrev_b32 v{vPO}, 8, v0
    v_mov_b32 v{vPE}, 0""")
    srd2()
    k(f"s_cmp_lg_u32 s98, 0\ns_cbranch_scc1 {n}_nz")
    for l in list(range(64, 8*r0, 64)) + list(range(S1C, S1C + 32*r1, 64)) + list(range(S2C, S2C + 8*r2, 64)):
        k(f"s_mov_b32 s66, {l*256}"); k.m(f"buffer_store_dword v{vPE}, v{vPO}, {SWS}, s66 offen sc1", "~z")
    k(f"{n}_nz:")
    k.m(f"buffer_store_dword v{vPE}, v{vPO}, {SWS}, s98 offen sc1", "zero")
    side_load(r); r.flush(); cpre()
    gemm1_setup(k); gemm1_sel(k); gemm1_setup2(k); side_addr2(r); r.flush(); poll_setup(k, 1, 1)
    k.wait("zero")
    k.m(f"buffer_store_dword v{vS1}, v{vSO}, {SDB}, s98 offen sc1", "sig")
    sigoff(k, sX, r0, 0, sW)
    k.wait("side"); k("s_barrier"); stamp(k, 1, ts, 2); side_do(r); r.flush(); stamp(k, 1, ts, 3)
    if sg0 == 1: poll_issue(k, SDB, "0")
    r = Rec(k)
    def pre_b(st):
        stamp(k, st + 2, ts, 3)
        if st + 1 == sg0: r.flush(); k.wait("sst"); poll_check(k, SDB, "0")
        if st + 1 == ck0: r.flush(); poll_check(k, SWS, "0")
    def post_b(st):
        stamp(k, st + 2, ts, 2)
        if st in (2, 5, 6, 7): stamp(k, st + 2, ts, 4)
        if st == 0: stamp(k, 1, ts)
        if st == 4: stamp(k, 2, ts)
        if st == 8: stamp(k, 3, ts)
        if st + 2 == sg0: poll_issue(r, SDB, "0")
        if st + 1 == sg0: signal(k, "s98"); p0(r, sW)
        if st + 2 == ck0: poll_issue(r, SWS, "0")
        if st + 1 == ck0: stats_load(r); poll_setup(r, 1, 28); sigoff(r, "s81", r1, S1C, None); sigregs(r, r1)
    gemm1c(k, pre_b, post_b, lambda g, i: r.pop())
    assert not r.q
    stamp(k, 4, ts)
    wqC = w2_loads(k, 0, 9); wqC0 = list(wqC)
    def gf(i):
        if i == nb: k("s_barrier")
        for _ in range(wg): wqC.pop(0)()
    gelu(k, gf)
    assert len(wqC) >= 9
    preC = len(wqC0) - len(wqC); vm = list(k.vm)
    k(f"s_branch {n}_cc\n{n}_fc:")
    k.vm = list(vm0)
    kaddr(k); srd2(); kload(k, 0); kload(k, 1, 80); kload(k, 2, 86); cpre()
    k(f"s_mov_b32 {sKD}, 0\ns_mov_b32 {sCNT}, 3\ns_mov_b32 s98, {OOB}\ns_mov_b32 s81, {KPAIR}")
    kaddr2(k); poll_setup(k, 1, 28); k.wait0(); k("s_barrier"); stamp(k, 1, ts)
    k(f"{n}_f2:")
    kA(k, pkf); k("s_barrier"); kB(k, rows); k(BAR); kC(k)
    for i in range(6): k(f"v_mov_b32 v{KP+i}, v{80+i}\nv_mov_b32 v{80+i}, v{86+i}")
    k("s_waitcnt lgkmcnt(0)")
    for i in range(55, 58): k(f"v_add_u32 v{i}, s81, v{i}")
    k(f"s_mov_b32 s81, {L_KD - KPAIR}\ns_sub_u32 {sCNT}, {sCNT}, 1\ns_cmp_lg_u32 {sCNT}, 0\ns_cbranch_scc1 {n}_f2")
    for i in (2, 3, 4): stamp(k, i, ts)
    for f in wqC0[:preC]: f()
    k("s_barrier\ns_barrier")
    k.vm = vm
    k(f"{n}_cc:")
    stamp(k, 5, ts)
    for _ in range(m1): wqC.pop(0)()
    k.wait("hst"); signal(k, "s98"); stamp(k, 6, ts)
    q = Rec(k); g2c_setup(q); sigoff(q, sX, r2, S2C, sW)
    while wqC: wqC.pop(0)(); q.pop(2)
    q.flush()
    poll_issue(k, SWS, "s99"); poll_check(k, SWS, "s99")
    if prc: k("s_setprio 0")
    stamp(k, 7, ts); k("s_barrier"); stamp(k, 8, ts)
    hq = h_loads(k)
    for i in range(dc): hq.pop(0)()
    poll_setup(k, 1, 32)
    lineoff(k, "s99", sCHT, r2, S2C, sTK); sigregs(k, r2)
    def hookc(i):
        if i in T5: stamp(k, T5.index(i) + 1, ts, 5)
        if i == 1: stamp(k, 9, ts)
        if i == 100 + sgb: signal(k, "s98")
        if i == pi2: poll_issue(k, SWS, "s99")
        if i == (23 if ckb == 2 else 28): stamp(k, 10, ts); poll_check(k, SWS, "s99"); stamp(k, 11, ts)
    gemm2c(k, hq, hookc, ckb)
    k(f"{n}_fin:")
    if ts:
        stamp(k, 12, ts); k.wait0(); stamp(k, 13, ts)
        k(f"""s_lshl3_add_u32 s66, s2, {sW8}
        s_lshl_b32 s66, s66, 7
        s_add_u32 s66, s66, 0x40000
        v_lshlrev_b32 v1, 2, v0
        s_mov_b32 exec_hi, 0
        buffer_store_dword v{vTS}, v1, {SWS}, s66 offen""")
        if X.get("dbg"):
            g = X["dbg"] - 1
            k(f"""s_mov_b32 exec_lo, 1
            v_not_b32 v2, v{vTS}
            buffer_atomic_umax v2, v1, {SDB}, 0 offen offset:4 sc1
            s_cmp_ge_u32 {sI}, 28
            s_cselect_b32 s66, 2, 0
            s_add_u32 s66, s66, {sG}
            s_cmp_eq_u32 s66, {g & 3}
            s_cselect_b32 s66, 0, {OOB}
            s_mov_b32 exec_lo, 0x3fff
            buffer_atomic_{'umax' if g & 4 else 'add'} v{vTS}, v1, {SDB}, s66 offen offset:8 sc1""")
    fin(k)
    return build(HDR + ["; @launch grid=(256,1,1) block=(512,1,1) lds=163840"], [k])
```

```python
from asmlib import K
import struct
def R(a, n=1, t="v"): return f"{t}{a}" if n == 1 else f"{t}[{a}:{a+n-1}]"
def F(x): return hex(struct.unpack("<I", struct.pack("<f", x))[0])
CNT = 0; ST = 0x10000; UT = 0x100000; AT = 0x400000; W2P = 0x700000; H = 0xA00000; WSN = 0x1100000
OOB = 0x40000000
SU, SW1, SWS, SW2, SOUT = "s[36:39]", "s[40:43]", "s[44:47]", "s[48:51]", "s[52:55]"
sW, sX, sI, sRB, sCT, sPAIR, sTK, sCHT = "s3", "s56", "s57", "s58", "s59", "s60", "s61", "s62"
sONE = "s63"
sKD = "s64"
sCNT = "s65"
SC = "sc1"
L_SU, L_SW = 131072, 131072 + 12288
L_TAB = 65536; TROW = 528; TCH = 62 * TROW
L_KD = 131072; KCOPY = 4160; KCH = 2 * KCOPY; KPAIR = 2 * KCH
X = {}
UP = lambda: 8192 + X.get('pu', 0)
AP = lambda: 4096 + X.get('pa', 0)
class Tag(str): pass
class G(K):
    def __init__(s, *a, **kw):
        super().__init__(*a, **kw); s.vm = []
    def m(s, txt, tag=None):
        s(txt); t = Tag(tag or ""); t.st = "_store" in txt or "_atomic" in txt; s.vm.append(t)
    def wait(s, tag, extra=""):
        if tag not in s.vm: return
        idx = max(i for i, t in enumerate(s.vm) if t == tag)
        n = 0 if s.vm[idx].st else sum(1 for t in s.vm[idx+1:] if not (t.st or t.startswith("~")))
        assert n <= 63, n
        s(f"s_waitcnt vmcnt({n}) {extra}".strip())
    def wait0(s): s("s_waitcnt vmcnt(0)"); s.vm = []

import re
class Rec:
    def __init__(s, k, remap=0, hi=64):
        s.k = k; s.q = []; s.name = k.name; s.remap = remap; s.hi = hi
    def _r(s, t):
        if not s.remap: return t
        f = lambda n: n + s.remap if 0 < n < s.hi else n
        t = re.sub(r"\bv\[(\d+):(\d+)\]", lambda m: f"v[{f(int(m[1]))}:{f(int(m[2]))}]", t)
        return re.sub(r"\bv(\d+)\b", lambda m: f"v{f(int(m[1]))}", t)
    def __call__(s, txt):
        for l in s._r(txt).strip("\n").split("\n"):
            l = l.strip(); f = (lambda l=l: s.k(l))
            if l.startswith("s_") and s.q: s.q[-1].append(f)
            else: s.q.append([f])
    def m(s, txt, tag=None): s.q.append([lambda t=s._r(txt): s.k.m(t, tag)])
    def wait(s, tag, extra=""): s.q.append([lambda: s.k.wait(tag, extra)])
    def do(s, f): s.q.append([f])
    def label(s, b): return s.k.label(b)
    def pop(s, n=1):
        for _ in range(n):
            if s.q:
                for f in s.q.pop(0): f()
    def flush(s): s.pop(len(s.q))
def prologue(k, prefetch=True, w8=0):
    k(f"""s_cmp_ge_u32 s2, 256
    s_cbranch_scc1 {k.name}_end
    s_load_dwordx16 s[4:19], s[0:1], 0
    s_load_dwordx16 s[20:35], s[0:1], 64""")
    if prefetch:
        k(f"""s_getpc_b64 s[66:67]
        {k.name}_pc:
        v_lshlrev_b32 v1, 7, v0
        v_min_u32 v1, {k.name}_end-{k.name}_pc, v1""")
        k.m(f"global_load_dword v{247 if w8 else 255}, v1, s[66:67]", "pf")
    k(f"""v_lshrrev_b32 v1, 6, v0
    v_and_b32 v0, 63, v0
    v_readfirstlane_b32 {'s101' if w8 else sW}, v1
    s_and_b32 {sX}, s2, 7
    s_lshr_b32 {sI}, s2, 3
    s_mul_i32 s66, {sI}, 37
    s_lshr_b32 s66, s66, 8
    s_mul_i32 s67, s66, 7
    s_sub_u32 s67, {sI}, s67
    s_lshr_b32 {sRB}, {sX}, 1
    s_lshl2_add_u32 {sRB}, {sRB}, s66
    s_and_b32 {sCT}, {sX}, 1
    s_mul_i32 {sCT}, {sCT}, 7
    s_add_u32 {sCT}, {sCT}, s67
    s_mul_i32 s66, {sI}, 3
    s_sub_u32 s66, s66, 56
    s_max_i32 s66, s66, {sI}
    s_mul_i32 {sPAIR}, {sX}, 40
    s_add_u32 {sPAIR}, {sPAIR}, s66
    s_lshr_b32 {sTK}, {sI}, 3
    s_lshl2_add_u32 {sTK}, {sX}, {sTK}
    s_and_b32 {sCHT}, {sI}, 7
    s_mov_b32 {sONE}, 0x3f803f80
    s_mov_b32 s38, 2621440
    s_mov_b32 s39, 0x20000
    s_mov_b32 s42, 2211840
    s_mov_b32 s43, 0x20000
    s_mov_b32 s46, {WSN}
    s_mov_b32 s47, 0x20000
    s_mov_b32 s50, 2211840
    s_mov_b32 s51, 0x20000
    s_mov_b32 s54, 2621440
    s_mov_b32 s55, 0x20000""")
    if w8: k(f"s_and_b32 {sW}, s101, 3\ns_lshr_b32 s100, s101, 2")
def srds(k):
    k("""s_waitcnt lgkmcnt(0)
    s_mov_b64 s[36:37], s[4:5]
    s_mov_b64 s[40:41], s[20:21]
    s_mov_b64 s[44:45], s[34:35]
    s_mov_b64 s[48:49], s[24:25]
    s_mov_b64 s[52:53], s[30:31]""")

def side_addr(k):
    k(f"s_lshl_b32 s66, {sW}, 6\nv_add_u32 v1, s66, v0")
    for j in range(3):
        k(f"""v_mul_u32_u24 v12, 6554, v1
        v_mul_u32_u24 v13, 3277, v1
        v_lshrrev_b32 v12, 16, v12
        v_lshrrev_b32 v13, 16, v13
        v_mul_u32_u24 v12, 1120, v12
        v_mul_u32_u24 v13, 960, v13
        v_lshl_add_u32 v{2+j}, v1, 4, v12
        v_lshl_add_u32 v{5+j}, v1, 4, v13""")
        if j < 2: k("v_add_u32 v1, 256, v1")
    k(f"""v_and_b32 v1, 31, v0
    v_lshlrev_b32 v10, 4, v1
    v_lshlrev_b32 v11, 3, v1
    v_lshrrev_b32 v12, 5, v0
    v_mul_u32_u24 v12, 1280, v12
    v_add_u32 v8, v12, v10
    v_add_u32 v9, v12, v11
    s_mul_i32 s68, {sTK}, 81920
    s_mul_i32 s66, {sCHT}, 160
    s_add_u32 s68, s68, s66
    s_lshr_b32 s66, s2, 2
    s_mul_i32 s70, s66, 40960
    s_and_b32 s66, s2, 3
    s_mul_i32 s66, s66, 320
    s_add_u32 s70, s70, s66
    s_cmp_ge_u32 {sW}, 2
    s_cselect_b32 s69, {OOB}, s68
    s_cselect_b32 s71, {OOB}, s70
    s_lshl_b32 s72, {sX}, 5
    s_add_u32 s72, s72, {sI}
    s_lshl2_add_u32 s72, s72, {sW}
    s_mul_i32 s72, s72, 2560
    s_lshl_b32 s73, {sW}, 10""")
def side_load(k):
    for j in range(3):
        k(f"s_add_u32 m0, s73, {L_SU + 4096*j}")
        k.m(f"buffer_load_dwordx4 v{2+j}, {SU}, {'s69' if j == 2 else 's68'} offen lds", "side")
    for j in range(3):
        k(f"s_add_u32 m0, s73, {L_SW + 4096*j}")
        k.m(f"buffer_load_dwordx4 v{5+j}, {SW2}, {'s71' if j == 2 else 's70'} offen lds", "side")
    k.m(f"buffer_load_dwordx4 v[16:19], v8, {SU}, s72 offen", "side")
    k.m(f"buffer_load_dwordx4 v[20:23], v8, {SU}, s72 offen offset:512", "side")
    k.m(f"buffer_load_dwordx2 v[24:25], v9, {SU}, s72 offen offset:1024", "side")
    k.m(f"global_load_dwordx4 v[28:31], v10, s[28:29]", "side")
    k.m(f"global_load_dwordx4 v[32:35], v10, s[28:29] offset:512", "side")
    k.m(f"global_load_dwordx2 v[36:37], v11, s[28:29] offset:1024", "side")
def side_addr2(k):
    k(f"""v_lshrrev_b32 v8, 4, v0
    v_bfe_u32 v9, v0, 2, 2
    v_and_b32 v10, 3, v0
    v_lshl_add_u32 v11, v8, 3, v9
    v_mul_u32_u24 v11, 160, v11
    v_lshl_add_u32 v11, v10, 3, v11
    s_and_b32 s66, {sW}, 1
    s_mul_i32 s67, s66, 5120
    s_lshr_b32 s74, {sW}, 1
    s_lshl_b32 s75, s74, 5
    s_add_u32 s67, s67, s75
    s_add_u32 s67, s67, {L_SU}
    v_add_u32 v2, s67, v11
    v_lshrrev_b32 v11, 5, v0
    v_lshl_add_u32 v11, v11, 4, v9
    v_and_b32 v12, 16, v0
    v_lshrrev_b32 v12, 2, v12
    v_add_u32 v11, v11, v12
    v_mul_u32_u24 v11, 320, v11
    s_lshl_b32 s67, s74, 6
    s_lshl3_add_u32 s67, s66, s67
    s_add_u32 s67, s67, {L_SW}
    v_lshl_add_u32 v3, v10, 4, v11
    v_add_u32 v3, s67, v3
    s_mul_i32 s67, s66, 160
    s_add_u32 s67, s67, {L_SW + 128}
    v_lshl_add_u32 v4, v10, 3, v11
    v_add_u32 v4, s67, v4
    v_bfe_u32 v9, v0, 1, 3
    v_mul_u32_u24 v9, {UP()}, v9
    v_lshl_add_u32 v9, v8, 4, v9
    v_and_b32 v10, 1, v0
    v_lshl_add_u32 v5, v10, 6, v9
    v_lshlrev_b32 v6, 4, v0
    v_and_b32 v7, 32, v0
    v_and_b32 v8, 31, v0
    v_cmp_eq_u32 vcc, 16, v8
    v_mov_b32 v8, {OOB}
    v_cndmask_b32 v7, v8, v7, vcc
    s_mul_i32 s68, {sCHT}, 5
    s_add_u32 s68, s68, s74
    s_mul_i32 s68, s68, {8*UP()}
    s_lshl1_add_u32 s67, {sTK}, s66
    s_lshl_b32 s67, s67, 7
    s_add_u32 s68, s68, s67
    s_add_u32 s68, s68, {UT}
    s_add_u32 s69, s68, {16*UP()}
    s_add_u32 s70, s68, {32*UP()}
    s_and_b32 s67, s2, 3
    s_mul_i32 s67, s67, 108
    s_lshr_b32 s71, s2, 2
    s_add_u32 s67, s67, s71
    s_mul_i32 s67, s67, 5120
    s_add_u32 s67, s67, {W2P}
    s_cmp_ge_u32 s2, 216
    s_cselect_b32 s67, {OOB}, s67
    s_add_u32 s71, s67, s73
    s_add_u32 s72, s71, {54*5120}
    s_mul_i32 s75, s66, {54*5120}
    s_add_u32 s75, s75, s67
    s_add_u32 s75, s75, 4096
    s_cmp_ge_u32 {sW}, 2
    s_cselect_b32 s70, {OOB}, s70
    s_cselect_b32 s75, {OOB}, s75
    s_lshl_b32 s76, {sX}, 5
    s_add_u32 s76, s76, {sI}
    s_lshl2_add_u32 s76, s76, {sW}
    s_lshl_b32 s76, s76, 6
    s_add_u32 s76, s76, {ST}""")
def side_do(k):
    for j in range(3):
        for e in range(2): k(f"ds_read_b64_tr_b16 {R(40+4*j+2*e,2)}, v2 offset:{64*j + 640*e}")
    for j in range(3):
        for e in range(2): k(f"ds_read_b64_tr_b16 {R(52+4*j+2*e,2)}, {'v4' if j == 2 else 'v3'} offset:{(160 if j == 1 else 0) + 2560*e}")
    for i in range(10):
        c = ("0", "0", "0") if i == 0 else ("v12", "v13", "v14")
        k(f"""v_dot2_f32_bf16 v12, v{16+i}, {sONE}, {c[0]}
        v_dot2_f32_bf16 v13, v{16+i}, v{16+i}, {c[1]}
        v_dot2_f32_bf16 v14, v{16+i}, v{28+i}, {c[2]}""")
        if i == 2: k("s_waitcnt lgkmcnt(0)")
        if 2 <= i < 8: k.m(f"buffer_store_dwordx4 {R(32+4*i,4)}, v{5 if i < 5 else 6}, {SWS}, {('s68', 's69', 's70', 's71', 's72', 's75')[i-2]} offen {SC}", "sst")
    for sh in (8, 4, 2, 1):
        for r in (12, 13, 14): k(f"v_add_f32 v{r}, v{r}, v{r} row_ror:{sh}")
    for r in (12, 13, 14): k(f"v_add_f32 v{r}, v{r}, v{r} row_bcast:15 row_mask:0xa")
    c0 = -2 * 0.7978845608028654 * 1.4426950408889634
    k(f"""v_mul_f32 v12, {F(-1/640)}, v12
    v_mul_f32 v13, {F(1/640)}, v13
    v_mul_f32 v14, {F(-1.4426950408889634)}, v14
    v_fma_f32 v13, -v12, v12, v13
    v_exp_f32 v14, v14
    v_max_f32 v13, 0, v13
    v_add_f32 v13, {F(1e-5)}, v13
    v_cvt_pk_bf16_f32 v16, v12, v12
    v_rsq_f32 v15, v13
    v_sqrt_f32 v22, v13
    v_add_f32 v14, 1.0, v14
    v_and_b32 v17, 0xffff0000, v16
    v_rcp_f32 v23, v14
    v_sub_f32 v17, v12, v17
    v_cvt_pk_bf16_f32 v18, v22, v22
    v_cvt_pk_bf16_f32 v17, v17, v17
    v_and_b32 v18, 0xffff0000, v18
    v_sub_f32 v19, v22, v18
    v_cvt_pk_bf16_f32 v18, v18, v19
    v_mov_b32 v19, 0
    v_mul_f32 v20, {F(c0)}, v15
    v_mul_f32 v21, v15, v15
    v_mul_f32 v21, {F(0.044715)}, v21
    v_mul_f32 v21, v20, v21""")
    k.m(f"buffer_store_dwordx4 v[16:19], v7, {SWS}, s76 offen {SC}", "sst")
    k.m(f"buffer_store_dwordx4 v[20:23], v7, {SWS}, s76 offen offset:16 {SC}", "sst")

KP = 88
def kgen_addr(k):
    k(f"""s_lshl2_add_u32 s66, {sPAIR}, {sW}
    s_lshl_b32 s67, s66, 7
    v_lshl_add_u32 v60, v0, 1, s67
    s_and_b32 s66, s66, -2
    v_mov_b32 v61, s66""")
def kgen_load(k, j, dst=KP):
    for i, p in enumerate((6, 8, 10, 12)):
        k.m(f"global_load_ushort v{dst+i}, v60, s[{p}:{p+1}] offset:{512*j}", "kp")
    for i, p in enumerate((14, 16)):
        k.m(f"global_load_ushort v{dst+4+i}, v61, s[{p}:{p+1}] offset:{4*j}", "kp")
def cmul(k, d, x, e, t):
    k(f"""v_pk_mul_f32 {R(t,2)}, {R(x,2)}, {R(e,2)} op_sel:[0,0] op_sel_hi:[1,0]
    v_pk_fma_f32 {R(d,2)}, {R(x,2)}, {R(e,2)}, {R(t,2)} op_sel:[1,1,0] op_sel_hi:[0,1,1] neg_lo:[1,0,0]""")
def kgen(k, before_b1=None, after_b1=None, fill=None):
    fill = fill or (lambda: None)
    L2E = 1.4426950408889634
    hi = struct.unpack("<f", struct.pack("<f", L2E))[0]; lo = L2E - hi
    lar, aim, cr, ci, ldt, dsk = range(KP, KP + 6)
    for r in range(KP, KP + 6): k(f"v_lshlrev_b32 v{r}, 16, v{r}")
    k(f"s_mov_b32 s66, {F(hi)}")
    for r, t in ((lar, 2), (ldt, 4)):
        k(f"""v_mul_f32 v{t}, s66, v{r}
        v_fma_f32 v{t+1}, v{r}, s66, -v{t}
        v_exp_f32 v{t}, v{t}
        v_fmac_f32 v{t+1}, {F(lo)}, v{r}
        v_mul_f32 v{t+1}, {F(0.6931471805599453)}, v{t+1}
        v_fmac_f32 v{t}, v{t}, v{t+1}
        v_cvt_pk_bf16_f32 v{t}, v{t}, v{t}
        v_and_b32 v{r}, 0xffff0000, v{t}""")
    E1, E8, E256, T, A0 = 8, 10, 12, 6, 16
    k(f"""v_mul_f32 v2, v{lar}, v{ldt}
    v_mul_f32 v3, v{aim}, v{ldt}
    v_mul_f32 v2, {F(-L2E)}, v2
    v_mul_f32 v3, 0.15915494, v3
    v_add_f32 v{ldt}, v{ldt}, v{ldt}
    v_mul_f32 v{A0}, v{cr}, v{ldt}
    v_mul_f32 v{A0+1}, v{ci}, v{ldt}""")
    for e, p in ((E1, 1.0), (E8, 8.0), (E256, 256.0)):
        k(f"""v_mul_f32 v5, {F(p)}, v3
        v_mul_f32 v4, {F(p)}, v2
        v_fract_f32 v5, v5
        v_exp_f32 v4, v4
        v_cos_f32 v{e}, v5
        v_sin_f32 v{e+1}, v5
        s_nop 0
        v_pk_mul_f32 {R(e,2)}, {R(e,2)}, v[4:5] op_sel_hi:[1,0]""")
        fill()
    k(f"""s_lshr_b32 s66, {sW}, 1
    s_mul_i32 s66, s66, {TCH}
    s_add_u32 s66, s66, {L_TAB}
    s_and_b32 s67, {sW}, 1
    s_lshl_b32 s67, s67, 8
    s_add_u32 s67, s67, s66
    v_lshl_add_u32 v2, v0, 2, s67
    v_mov_b32 v5, 0x3f80
    ds_write_b32 v2, v5 offset:{30*TROW}""")
    def row(hh, s):
        rho = 8 * (s >> 2) + 4 * hh + (s & 3)
        return rho - (rho > 27)
    tmp = [40]
    def put(x, rows, neg):
        t = tmp[0]; tmp[0] = 40 + (t - 39) % 8
        k(f"v_cvt_pk_bf16_f32 v{t}, v{x}, {'-' if neg else ''}v{x+1}")
        for r in rows: k(f"ds_write_b32 v2, v{t} offset:{r*TROW}")
        if t % 4 == 0: fill()
    for j in range(9):
        if j: cmul(k, A0 + 2*j, A0 + 2*j - 2, E1, T)
        put(A0 + 2*j, [row(hh, j - 4*hh) for hh in (0, 1) if 0 <= j - 4*hh <= 4], 1)
    for j in range(5):
        cmul(k, A0 + 4*j, A0 + 4*j, E256, T)
        put(A0 + 4*j, [row(hh, 5 + j - 2*hh) for hh in (0, 1) if 0 <= j - 2*hh <= 2], 1)
    for hh in (0, 1):
        for j in range(3):
            cmul(k, A0 + 8*j, A0 + 8*j, E256, T); put(A0 + 8*j, [row(hh, 8 + j)], 1)
    for q in range(4):
        for j in range(2):
            cmul(k, A0 + 16*j, A0 + 16*j, E256, T); put(A0 + 16*j, [row(q & 1, 11 + 2*(q >> 1) + j)], 1)
    for b in range(1, 32):
        if b > 1: cmul(k, 14, E8 if b == 2 else 14, E8, T)
        put(E8 if b == 1 else 14, [30 + b], 0)
    k(f"""v_and_b32 v5, 31, v0
    v_lshrrev_b32 v6, 5, v0
    v_mul_u32_u24 v4, {TROW}, v5
    v_lshl_add_u32 v4, v6, 4, v4
    v_add_u32 v4, s66, v4
    v_cmp_lt_u32 vcc, 27, v5
    v_subrev_u32 v3, {TROW}, v4
    v_cndmask_b32 v3, v4, v3, vcc""")
    if before_b1: before_b1()
    k("s_waitcnt lgkmcnt(0)\ns_barrier")
    if after_b1: after_b1()
    FA = 96
    fa = lambda j: FA + 8 * (j % 7)
    for j in range(16):
        k(f"ds_read_b128 {R(fa(j),4)}, v3 offset:{32*j}\nds_read_b128 {R(fa(j)+4,4)}, v4 offset:{30*TROW+32*j}")
        if j >= 4:
            k(f"s_waitcnt lgkmcnt(8)")
            jj = j - 4
            k(f"v_mfma_f32_32x32x16_bf16 v[16:31], {R(fa(jj),4)}, {R(fa(jj)+4,4)}, {'0' if jj == 0 else 'v[16:31]'}")
            if jj & 1: fill()
    k(f"""s_mul_i32 s66, {sW}, {KCOPY}
    s_add_u32 s66, s66, {sKD}
    v_lshlrev_b32 v5, 4, v5
    v_sub_u32 v5, s66, v5
    v_lshlrev_b32 v7, 3, v6
    v_sub_u32 v2, v5, v7
    v_lshlrev_b32 v7, 9, v6
    v_sub_u32 v3, v5, v7
    v_and_b32 v4, 7, v0
    v_lshl_add_u32 v4, v4, 2, s66
    v_cmp_eq_u32 vcc, 0, v0
    v_and_b32 v7, 1, v0
    v_cndmask_b32 v{dsk}, 0, v{dsk}, vcc
    v_cmp_eq_u32 s[68:69], 1, v7
    v_add_u32 v2, {4088-512}, v2
    v_add_u32 v3, {4080-3072}, v3""")
    for jj in range(12, 16):
        k(f"s_waitcnt lgkmcnt({2*(15-jj)})")
        k(f"v_mfma_f32_32x32x16_bf16 v[16:31], {R(fa(jj),4)}, {R(fa(jj)+4,4)}, v[16:31]")
    a = list(range(16, 21)); b = [21, 22, 23]; c = [24, 25, 26]; d = [[27, 28, 32], [29, 30, 33]]
    k(f"""s_bitcmp1_b32 {sW}, 0
    s_nop 7
    v_add_f32 v16, v16, v{dsk}
    v_cndmask_b32 v32, v27, v28, s[68:69]
    v_cndmask_b32 v33, v29, v30, s[68:69]
    v_mov_b32 v34, 0""")
    le, lj = k.label("ke"), k.label("kj")
    k(f"s_cbranch_scc1 {le}")
    def pk(dst, prs):
        for i, (x, y) in enumerate(prs): k(f"v_cvt_pk_bf16_f32 v{dst+i}, v{x}, v{y}")
    pk(36, [(a[3], a[2]), (a[1], a[0]), (b[2], b[1]), (b[0], b[0])])
    pk(40, [(c[2], c[2]), (c[1], c[1]), (c[1], c[0]), (c[0], c[0])])
    for i, (d0, d1, x) in enumerate(d): pk(44 + 4*i, [(d1, d1), (d1, x), (d0, d0), (d0, d0)])
    k(f"s_branch {lj}\n{le}:")
    pk(36, [(a[4], a[3]), (a[2], a[1]), (b[2], b[2]), (b[1], b[0])])
    pk(40, [(c[2], c[2]), (c[2], c[1]), (c[1], c[1]), (c[0], c[0])])
    for i, (d0, d1, x) in enumerate(d): pk(44 + 4*i, [(d1, d1), (d1, d1), (x, d0), (d0, d0)])
    k(f"""v_cvt_pk_bf16_f32 v34, v16, v34
    v_cndmask_b32 v34, 0, v34, vcc
    {lj}:
    ds_write_b64 v2, v[36:37] offset:512
    ds_write_b64 v2, v[38:39]
    ds_write_b128 v3, v[40:43] offset:2048
    ds_write_b128 v3, v[44:47] offset:1024
    ds_write_b128 v3, v[48:51]
    s_mov_b64 exec, 0xff
    ds_write_b32 v4, v34 offset:4096
    s_mov_b64 exec, -1""")
```

```python
from g1 import *
import g0, g1
sG, sW8 = "s100", "s101"
W2R = 108
vPO, vPE, vPG, vSO, vS1, vL16, vL16X, vTS = range(248, 256)
class LG:
    def __init__(s, k): s.k = k; s.q = []; s.done = 0
    def __call__(s, txt, tag=None): s.k(txt); s.q.append(tag)
    def wait(s, *tags):
        idx = max(i for i, t in enumerate(s.q) if t in tags) + 1
        if idx <= s.done: return
        n = min(len(s.q) - idx, 15); s.k(f"s_waitcnt lgkmcnt({n})"); s.done = len(s.q) - n
KP = 64; TV = 116; vUL = 72
def kaddr(k):
    k(f"""s_lshl2_add_u32 s66, {sPAIR}, {sW}
    s_lshl_b32 s67, s66, 7
    v_lshl_add_u32 v70, v0, 1, s67
    s_and_b32 s66, s66, -2
    v_mov_b32 v71, s66""")
def kload(k, j, dst=KP):
    for i, p in enumerate((6, 8, 10, 12)): k.m(f"global_load_ushort v{dst+i}, v70, s[{p}:{p+1}] offset:{512*j}", "kp")
    for i, p in enumerate((14, 16)): k.m(f"global_load_ushort v{dst+4+i}, v71, s[{p}:{p+1}] offset:{4*j}", "kp")
def cm(d, x, e, t, pk):
    if pk: return [f"v_pk_mul_f32 {R(t,2)}, {R(x,2)}, {R(e,2)} op_sel:[0,0] op_sel_hi:[1,0]",
                   f"v_pk_fma_f32 {R(d,2)}, {R(x,2)}, {R(e,2)}, {R(t,2)} op_sel:[1,1,0] op_sel_hi:[0,1,1] neg_lo:[1,0,0]"]
    return [f"v_mul_f32 v{t}, v{x+1}, v{e+1}", f"v_mul_f32 v{t+1}, v{x+1}, v{e}",
            f"v_fma_f32 v{d+1}, v{x}, v{e+1}, v{t+1}", f"v_fma_f32 v{d}, v{x}, v{e}, -v{t}"]
def kA(k, pk=0, direct=0):
    L2E = 1.4426950408889634
    hi = struct.unpack("<f", struct.pack("<f", L2E))[0]; lo = L2E - hi
    lar, aim, cr, ci, ldt, dsk = range(KP, KP + 6)
    for r in range(KP, KP + 6): k(f"v_lshlrev_b32 v{r}, 16, v{r}")
    k(f"s_mov_b32 s66, {F(hi)}")
    t2 = [f"""v_mul_f32 v{t}, s66, v{r}
        v_fma_f32 v{t+1}, v{r}, s66, -v{t}
        v_exp_f32 v{t}, v{t}
        v_fmac_f32 v{t+1}, {F(lo)}, v{r}
        v_mul_f32 v{t+1}, {F(0.6931471805599453)}, v{t+1}
        v_fmac_f32 v{t}, v{t}, v{t+1}
        v_cvt_pk_bf16_f32 v{t}, v{t}, v{t}
        v_and_b32 v{r}, 0xffff0000, v{t}""".split("\n") for r, t in ((lar, 2), (ldt, 4))]
    for a, b in zip(*t2): k(a); k(b)
    E1, E8, E256, A0 = 8, 10, 12, 16
    k(f"""v_mul_f32 v2, v{lar}, v{ldt}
    v_mul_f32 v3, v{aim}, v{ldt}
    v_mul_f32 v2, {F(-L2E)}, v2
    v_mul_f32 v3, 0.15915494, v3
    v_add_f32 v{ldt}, v{ldt}, v{ldt}
    v_mul_f32 v{A0}, v{cr}, v{ldt}
    v_mul_f32 v{A0+1}, v{ci}, v{ldt}""")
    t3 = [f"""v_mul_f32 v{t+1}, {F(p)}, v3
        v_mul_f32 v{t}, {F(p)}, v2
        v_fract_f32 v{t+1}, v{t+1}
        v_exp_f32 v{t}, v{t}
        v_cos_f32 v{e}, v{t+1}
        v_sin_f32 v{e+1}, v{t+1}
        v_mul_f32 v{e}, v{e}, v{t}
        v_mul_f32 v{e+1}, v{e+1}, v{t}""".split("\n") for e, p, t in ((E1, 1.0, 4), (E8, 8.0, 6), (E256, 256.0, 34))]
    for x in zip(*t3):
        for y in x: k(y)
    def row(hh, s):
        rho = 8 * (s >> 2) + 4 * hh + (s & 3)
        return rho - (rho > 27)
    rows = []; SA = []; SB = []
    def put(S, x, rw, neg):
        S.append(f"v_cvt_pk_bf16_f32 v{TV+len(rows)}, v{x}, {'-' if neg else ''}v{x+1}")
        if direct: S += [f"ds_write_b32 v52, v{TV+len(rows)} offset:{r*TROW}" for r in rw]
        rows.append(rw)
    if direct: k(f"ds_write_b32 v52, v58 offset:{30*TROW}")
    for j in range(9):
        if j: SA += cm(A0 + 2*j, A0 + 2*j - 2, E1, 4, pk)
        put(SA, A0 + 2*j, [row(hh, j - 4*hh) for hh in (0, 1) if 0 <= j - 4*hh <= 4], 1)
    for j in range(5):
        SA += cm(A0 + 4*j, A0 + 4*j, E256, 4, pk); put(SA, A0 + 4*j, [row(hh, 5 + j - 2*hh) for hh in (0, 1) if 0 <= j - 2*hh <= 2], 1)
    for hh in (0, 1):
        for j in range(3): SA += cm(A0 + 8*j, A0 + 8*j, E256, 4, pk); put(SA, A0 + 8*j, [row(hh, 8 + j)], 1)
    for q in range(4):
        for j in range(2): SA += cm(A0 + 16*j, A0 + 16*j, E256, 4, pk); put(SA, A0 + 16*j, [row(q & 1, 11 + 2*(q >> 1) + j)], 1)
    for b in range(1, 32):
        if b > 1: SB += cm(14, E8 if b == 2 else 14, E8, 6, pk)
        put(SB, E8 if b == 1 else 14, [30 + b], 0)
    while SA or SB:
        if SB: k(SB.pop(0))
        if SA: k(SA.pop(0))
    return rows
def kaddr2(k, tab=L_TAB):
    k(f"""s_lshr_b32 s66, {sW}, 1
    s_mul_i32 s66, s66, {TCH}
    s_add_u32 s66, s66, {tab}
    s_and_b32 s67, {sW}, 1
    s_lshl_b32 s67, s67, 8
    s_add_u32 s67, s67, s66
    v_lshl_add_u32 v52, v0, 2, s67
    v_and_b32 v58, 31, v0
    v_lshrrev_b32 v59, 5, v0
    v_mul_u32_u24 v54, {TROW}, v58
    v_lshl_add_u32 v54, v59, 4, v54
    v_add_u32 v54, s66, v54
    v_cmp_lt_u32 vcc, 27, v58
    v_subrev_u32 v53, {TROW}, v54
    v_cndmask_b32 v53, v54, v53, vcc
    s_mul_i32 s66, {sW}, {KCOPY}
    s_add_u32 s66, s66, {sKD}
    v_lshlrev_b32 v58, 4, v58
    v_sub_u32 v58, s66, v58
    v_lshlrev_b32 v57, 3, v59
    v_sub_u32 v55, v58, v57
    v_lshlrev_b32 v57, 9, v59
    v_sub_u32 v56, v58, v57
    v_and_b32 v57, 7, v0
    v_lshl_add_u32 v57, v57, 2, s66
    v_add_u32 v55, {4088-512}, v55
    v_add_u32 v56, {4080-3072}, v56
    v_mov_b32 v58, 0x3f80""")
def kB(k, rows):
    k(f"ds_write_b32 v52, v58 offset:{30*TROW}")
    for i, rw in enumerate(rows):
        for r in rw: k(f"ds_write_b32 v52, v{TV+i} offset:{r*TROW}")
def kC(k, hook=lambda j: None, slots=range(TV, TV + 56, 8)):
    dsk = KP + 5; lag = len(slots) - 2
    fa = lambda j: slots[j % len(slots)]
    def mf(jj): k(f"v_mfma_f32_32x32x16_bf16 v[16:31], {R(fa(jj),4)}, {R(fa(jj)+4,4)}, {'0' if jj == 0 else 'v[16:31]'}"); hook(jj)
    for j in range(16):
        k(f"ds_read_b128 {R(fa(j),4)}, v53 offset:{32*j}\nds_read_b128 {R(fa(j)+4,4)}, v54 offset:{30*TROW+32*j}")
        if j >= lag: k(f"s_waitcnt lgkmcnt({2*lag})"); mf(j - lag)
    k(f"""v_cmp_eq_u32 vcc, 0, v0
    s_mov_b32 s68, 0xaaaaaaaa
    s_mov_b32 s69, s68
    v_cndmask_b32 v{dsk}, 0, v{dsk}, vcc""")
    for jj in range(16 - lag, 16): k(f"s_waitcnt lgkmcnt({2*(15-jj)})"); mf(jj)
    a = list(range(16, 21)); b = [21, 22, 23]; c = [24, 25, 26]; d = [[27, 28, 32], [29, 30, 33]]
    k(f"""s_bitcmp1_b32 {sW}, 0
    v_add_f32 v16, v16, v{dsk}
    v_mov_b32 v34, 0
    v_cndmask_b32 v32, v27, v28, s[68:69]
    v_cndmask_b32 v33, v29, v30, s[68:69]""")
    le, lj = k.label("ke"), k.label("kj")
    k(f"s_cbranch_scc1 {le}")
    def pk(dst, prs):
        for i, (x, y) in enumerate(prs): k(f"v_cvt_pk_bf16_f32 v{dst+i}, v{x}, v{y}")
    pk(36, [(a[3], a[2]), (a[1], a[0]), (b[2], b[1]), (b[0], b[0])])
    pk(40, [(c[2], c[2]), (c[1], c[1]), (c[1], c[0]), (c[0], c[0])])
    for i, (d0, d1, x) in enumerate(d): pk(44 + 4*i, [(d1, d1), (d1, x), (d0, d0), (d0, d0)])
    k(f"s_branch {lj}\n{le}:")
    pk(36, [(a[4], a[3]), (a[2], a[1]), (b[2], b[2]), (b[1], b[0])])
    pk(40, [(c[2], c[2]), (c[2], c[1]), (c[1], c[1]), (c[0], c[0])])
    for i, (d0, d1, x) in enumerate(d): pk(44 + 4*i, [(d1, d1), (d1, d1), (x, d0), (d0, d0)])
    k(f"""v_cvt_pk_bf16_f32 v34, v16, v34
    v_cndmask_b32 v34, 0, v34, vcc
    {lj}:
    ds_write_b64 v55, v[36:37] offset:512
    ds_write_b64 v55, v[38:39]
    ds_write_b128 v56, v[40:43] offset:2048
    ds_write_b128 v56, v[44:47] offset:1024
    ds_write_b128 v56, v[48:51]
    s_mov_b64 exec, 0xff
    ds_write_b32 v57, v34 offset:4096
    s_mov_b64 exec, -1""")
BLK = 18432
def uload(k, dst=vUL):
    k(f"""s_mul_i32 s76, {sPAIR}, {UP()}
    s_lshl_b32 s72, {sW}, 11
    s_add_u32 s76, s76, s72
    s_add_u32 s76, s76, {UT}""")
    for j in range(2): k.m(f"buffer_load_dwordx4 {R(dst+4*j,4)}, v{vL16}, {SWS}, s76 offen offset:{1024*j} {SC}", "ul")
def cv_setup(k):
    k(f"""v_bfe_u32 v1, v0, 2, 1
    v_mul_u32_u24 v1, {UCH}, v1
    v_lshrrev_b32 v3, 3, v0
    v_lshl_add_u32 v1, v3, 6, v1
    v_and_b32 v3, 3, v0
    v_lshl_add_u32 v1, v3, 4, v1
    s_lshl_b32 s66, {sW}, 10
    s_add_u32 s66, s66, {L_U + 512}
    v_add_u32 v1, s66, v1
    s_lshr_b32 s74, {sW}, 1
    s_and_b32 s75, {sW}, 1
    s_mul_i32 s66, s74, {UCH}
    s_add_u32 s66, s66, {L_U}
    s_lshl_b32 s70, s75, 8
    s_add_u32 s67, s66, s70
    v_lshl_add_u32 v2, v0, 2, s67
    s_sub_u32 s66, s66, s70
    s_add_u32 s66, s66, {480-192}
    v_and_b32 v9, 15, v0
    v_lshrrev_b32 v10, 4, v0
    v_lshl_add_u32 v3, v9, 5, s66
    v_lshl_add_u32 v3, v10, 4, v3
    s_mul_i32 s66, s74, {KCH}
    s_add_u32 s66, s66, {sKD}
    s_sub_u32 s66, s66, s70
    s_add_u32 s66, s66, {4064 + KCOPY - 512 - 192}
    v_and_b32 v7, 1, v0
    v_mul_u32_u24 v7, {KCOPY + 4}, v7
    v_and_b32 v4, 14, v0
    v_lshl_add_u32 v7, v4, 1, v7
    v_sub_u32 v7, s66, v7
    v_lshl_add_u32 v4, v10, 4, v7
    v_subrev_u32 v5, 1024, v4
    v_subrev_u32 v6, 2048, v4
    v_subrev_u32 v7, 3072, v4
    v_lshlrev_b32 v8, 6, v9
    v_lshl_add_u32 v8, v10, 4, v8
    v_mov_b32 v11, 0""")
def cv_x(k, base, stride):
    k(f"""s_mul_i32 s66, {sW}, {stride}
    s_add_u32 s66, s66, {base}
    v_lshl_add_u32 v9, v0, 4, s66
    s_xor_b32 s66, {sW}, 1
    s_mul_i32 s66, s66, {stride}
    s_add_u32 s66, s66, {base}
    v_lshl_add_u32 v10, v0, 4, s66""")
def cv_u(k, src=vUL):
    k.wait("ul")
    k(f"""ds_write_b128 v1, {R(src,4)}
    ds_write_b128 v1, {R(src+4,4)} offset:512
    ds_write_b32 v2, v11
    s_lshl1_add_u32 s71, {sPAIR}, s74
    s_mul_i32 s71, s71, {AP()}
    s_lshl_b32 s72, s75, 11
    s_add_u32 s71, s71, s72
    s_add_u32 s71, s71, {AT}""")
CA, CFA, CFB = 12, 44, 76
def cv_main(k, fill=lambda i, n: None):
    L = LG(k)
    def rA(i, s):
        o = 128 * (1 - (s & 1)) + 16 * (3 - i)
        return [(f"ds_read2_b32 {R(CFA+4*s+2*e,2)}, v{4+(s>>1)} offset0:{o+2*e} offset1:{o+2*e+1}", f"A{i}{s}") for e in range(2)]
    def rB(i, d): return [(f"ds_read_b128 {R(CFB+4*d,4)}, v3 offset:{512*d + 64*(3-i)}", f"B{i}{d}")]
    pend = rB(0, 7) + rA(0, 0)
    for d in range(6, -1, -1): pend += rB(0, d)
    for x in pend: L(*x)
    pend = []
    for s in range(1, 8): pend += rA(0, s)
    for i in range(4):
        n = 0
        for s in range(8):
            for d in range(7 - s, -1, -1):
                while any(t in (f"A{i}{s}", f"B{i}{d}") for _, t in pend): L(*pend.pop(0))
                L.wait(f"A{i}{s}", f"B{i}{d}")
                a = R(CA + 4*(s + d), 4)
                k(f"v_mfma_f32_16x16x32_bf16 {a}, {R(CFA+4*s,4)}, {R(CFB+4*d,4)}, {'0' if i == 0 and s == 0 else a}")
                if i < 3:
                    if d == 7 - s: pend = rB(i + 1, d) + pend
                    if d == 0: pend += rA(i + 1, s)
                if pend: L(*pend.pop(0))
                fill(i, n); n += 1
    le, lj = k.label("cx"), k.label("cy")
    k(f"s_cmp_eq_u32 s75, 0\ns_nop 6\ns_cbranch_scc1 {le}")
    for t in range(4): k(f"ds_write_b128 v9, {R(CA+4*t,4)} offset:{1024*t}")
    k(f"s_branch {lj}\n{le}:")
    for t in range(4): k(f"ds_write_b128 v9, {R(CA+16+4*t,4)} offset:{1024*t}")
    k(f"{lj}:")
def cv_fin(k, mid=lambda: None):
    le, lj = k.label("cx"), k.label("cy")
    k(f"s_cmp_eq_u32 s75, 0\ns_cbranch_scc1 {le}")
    for t in range(4): k(f"ds_read_b128 {R(CA+4*t,4)}, v10 offset:{1024*t}")
    k(f"s_branch {lj}\n{le}:")
    for t in range(4): k(f"ds_read_b128 {R(CA+16+4*t,4)}, v10 offset:{1024*t}")
    k(f"{lj}:")
    mid()
    for tp in range(2):
        k(f"s_waitcnt lgkmcnt({2-2*tp})")
        for p in range(4): k(f"v_pk_add_f32 {R(CA+8*tp+2*p,2)}, {R(CA+8*tp+2*p,2)}, {R(CA+16+8*tp+2*p,2)}")
        for p in range(4): k(f"v_cvt_pk_bf16_f32 v{44+4*tp+p}, v{CA+8*tp+2*p}, v{CA+8*tp+2*p+1}")
        k.m(f"buffer_store_dwordx4 {R(44+4*tp,4)}, v8, {SWS}, s71 offen offset:{1024*tp} {SC}", "ast")
def wf(i): return R(W2R + 4*i, 4)
def w2_setup(k):
    k(f"""v_lshlrev_b32 v{vL16}, 4, v0
    s_cmp_ge_u32 {sW8}, 6
    s_cselect_b32 s66, {OOB}, 0
    v_add_u32 v{vL16X}, s66, v{vL16}
    s_mul_i32 s85, {sCHT}, 54
    s_add_u32 s85, s85, {sW8}
    s_mul_i32 s85, s85, 5120
    s_add_u32 s85, s85, {W2P}""")
def w2_loads(k, g, first):
    order = list(range(first, 35)) + list(range(first)); out = []; cur = 0
    for i in order:
        s, q = divmod(i, 5); c = q if q == 4 else q ^ (2*g)
        off = 40960*s + 1024*c; base = off & ~4095; d = base - cur; cur = base
        def f(i=i, s=s, d=d, o=off & 4095):
            if X.get('now2'): return
            if d: k(f"s_add_u32 s85, s85, {d & 0xffffffff}")
            k.m(f"buffer_load_dwordx4 {wf(i)}, v{vL16X if s == 6 else vL16}, {SWS}, s85 offen offset:{o} {SC}", "w2p")
        out.append(f)
    return out
RING = 52
def hf(j, s): return R(RING + 28*(j & 1) + 4*s, 4)
def h_loads(k):
    def mk(i):
        def f():
            j, s = divmod(i, 7)
            if s == 0:
                k(f"""s_add_u32 s86, {sW}, {1+j}
                s_and_b32 s86, s86, 3
                s_lshl2_add_u32 s86, {sTK}, s86
                s_mul_i32 s86, s86, 54
                s_add_u32 s86, s86, {sW8}
                s_lshl_b32 s86, s86, 10
                s_add_u32 s86, s86, {H}""")
            else: k("s_add_u32 s86, s86, 8192")
            k.m(f"buffer_load_dwordx4 {hf(j, s)}, v{vL16X if s == 6 else vL16}, {SWS}, s86 offen {SC}", f"h{j}_{s}")
        return f
    return [mk(i) for i in range(28)]
def g2_setup(k):
    k(f"""v_and_b32 v50, 15, v0
    s_lshl2_add_u32 s68, {sTK}, {sW}
    s_lshl_b32 s69, s68, 9
    s_add_u32 s69, s69, {ST}
    v_lshlrev_b32 v1, 5, v50""")
    k.m(f"buffer_load_dword v1, v1, {SWS}, s69 offen offset:28 {SC}", "g")
    k(f"s_mul_i32 s79, {sCHT}, 160\nv_lshl_add_u32 v45, v50, 3, s79")
    k.m(f"global_load_dword v{vPG}, v45, s[26:27] offset:32", "g")
    k(f"""v_and_b32 v47, 48, v0
    v_mul_u32_u24 v45, 1280, v50
    v_lshrrev_b32 v46, 1, v47
    v_add_u32 v46, v45, v46
    v_add_u32 v45, v45, v47
    s_mul_i32 s87, s68, 20480
    s_add_u32 s87, s87, s79
    s_cmp_eq_u32 {sG}, 0
    s_cselect_b32 s72, s87, {OOB}
    s_lshl_b32 s69, {sG}, 6
    s_add_u32 s87, s87, s69
    s_add_u32 s76, s79, s69
    v_lshl_add_u32 v44, v50, 12, v47
    v_and_b32 v3, 12, v0
    v_lshl_add_u32 v3, v3, 12, v44
    s_mul_i32 s88, {sCHT}, {80*4096}
    s_lshr_b32 s69, {sTK}, 3
    s_lshl_b32 s69, s69, 10
    s_add_u32 s88, s88, s69
    s_and_b32 s69, s68, 15
    s_lshl_b32 s69, s69, 6
    s_add_u32 s88, s88, s69
    s_add_u32 s88, s88, {AT + 262144}
    s_lshl_b32 s69, {sG}, 17
    s_add_u32 s73, s88, s69
    s_sub_u32 s73, s73, 262144
    s_add_u32 s74, s73, 16384
    v_lshlrev_b32 v48, 2, v50
    v_and_b32 v48, 48, v48
    v_cmp_eq_u32 vcc, v48, v47
    v_and_b32 v48, 1, v0
    v_lshlrev_b32 v48, 4, v48
    v_mov_b32 v49, 0x3f80
    v_lshlrev_b32 v48, v48, v49
    v_cndmask_b32 v51, 0, v48, vcc
    s_bfe_u32 s69, {sTK}, 0x10002
    s_lshl_b32 s69, s69, 1
    v_bfe_u32 v50, v0, 1, 1
    v_add_u32 v50, s69, v50""")
    for i in (0, 1): k(f"v_cmp_eq_u32 vcc, {i}, v50\nv_cndmask_b32 v{48+i}, 0, v51, vcc")
    k("v_cmp_eq_u32 vcc, 2, v50\nv_cmp_eq_u32 s[70:71], 3, v50\nv_cndmask_b32 v50, 0, v51, vcc\nv_cndmask_b32 v51, 0, v51, s[70:71]")
def gemm2(k, hq, hook, q, sb=2, np_=3):
    pend = []; AF = 52; BB = 4; B2 = 16; Pb = [W2R, W2R + 12, W2R + 24, 64]; own = (0, 1, 4)
    for j in range(4):
        acc = 4 + 20 * (j & 1)
        for s in range(7):
            hook(7*j + s)
            if j == 3 and s == sb:
                assert not pend and not q.q
                k(f"""s_waitcnt lgkmcnt(0)
                s_barrier
                v_add_u32 v22, s76, v47
                v_lshrrev_b32 v23, 1, v47
                v_add_u32 v23, s79, v23""")
                for i, (v, so) in enumerate(((3, "s73"), (3, "s74"), (44, "s88"))):
                    pend.append(lambda i=i, v=v, so=so: k.m(f"buffer_load_dwordx4 {R(AF+4*i,4)}, v{v}, {SWS}, {so} offen {SC}", "a"))
                pend.append(lambda: k.m(f"global_load_dwordx4 {R(B2,4)}, v22, s[26:27]", "b2"))
                pend.append(lambda: k.m(f"global_load_dwordx2 {R(B2+4,2)}, v23, s[26:27] offset:128", "b2"))
                k(f"""s_mul_i32 s66, {sW8}, {BLK}
                v_add_u32 v2, s66, v{vL16}
                s_xor_b32 s66, {sW8}, 4
                s_mul_i32 s66, s66, {BLK}
                v_add_u32 v47, s66, v{vL16}""")
                L = LG(k); rd = []
                src = [(jj, o) for jj in range(3) for o in (0, 1)]; dst = [BB] + Pb + [Pb[0]]
                def R_(n): return [lambda n=n, i=i, q=q: L(f"ds_read_b128 {R(dst[n]+4*i,4)}, v{47 if src[n][1] else 2} offset:{5120*src[n][0]+1024*(q if q == 4 else q + 2*src[n][1])}", n) for i, q in enumerate(own)]
                def A_(n): return [lambda n=n: L.wait(n)] + [f"v_add_f32 v{BB+i}, v{BB+i}, v{dst[n]+i}" for i in range(12)]
                ld = pend; pend = []
                for n in range(5): pend += R_(n) + [ld[n]]
                pend += A_(1) + R_(5) + A_(2) + A_(3) + A_(4) + A_(5)
            k.wait(f"h{j}_{s}")
            for c in ((2, 3, 4, 0, 1) if (j, s) == (3, 6) else range(5)):
                a = R(acc + 4*c, 4)
                k(f"v_mfma_f32_16x16x32_bf16 {a}, {wf(5*s+c)}, {hf(j, s)}, {'0' if s == 0 else a}")
                if s >= 1 or c >= 2:
                    for _ in range(np_ if j == 3 and s >= sb else 1):
                        if pend:
                            x = pend.pop(0); k(x) if isinstance(x, str) else x()
                        elif j == 0 or s >= 3: q.pop()
            if hq: hq.pop(0)()
        if j < 3:
            pend.append(f"s_add_u32 s66, {sW}, {1+j}\ns_and_b32 s66, s66, 3\ns_lshl2_add_u32 s66, {sG}, s66\ns_mul_i32 s66, s66, {BLK}\nv_add_u32 v2, s66, v{vL16}")
            for c in range(5): pend.append(f"ds_write_b128 v2, {R(acc+4*c,4)} offset:{5120*j+1024*c}")
    while pend:
        x = pend.pop(0); k(x) if isinstance(x, str) else x()
    for i in range(3): k(f"ds_write_b128 v2, {R(24+8+4*i,4)} offset:{15360+1024*i}")
    hook(28); k.wait("a"); hook(29)
    D = W2R; Q = W2R + 12; U = W2R + 24
    for i in range(3): k(f"v_mfma_f32_16x16x32_bf16 {R(D+4*i,4)}, {R(AF+4*i,4)}, v[48:51], 0")
    k.wait("b2")
    for i in range(6): k(f"v_lshlrev_b32 v{U+2*i}, 16, v{B2+i}\nv_and_b32 v{U+2*i+1}, 0xffff0000, v{B2+i}")
    k("s_waitcnt lgkmcnt(0)\ns_barrier"); hook(30)
    for i in range(3): k(f"ds_read_b128 {R(Q+4*i,4)}, v47 offset:{15360+1024*i}")
    for i in range(6): k(f"v_pk_add_f32 {R(BB+2*i,2)}, {R(BB+2*i,2)}, {R(U+2*i,2)}")
    for i in range(6): k(f"v_pk_add_f32 {R(BB+2*i,2)}, {R(BB+2*i,2)}, {R(24+4*own[i>>1]+2*(i&1),2)}")
    for h, (lo, hi) in enumerate(((0, 4), (4, 6))):
        k(f"s_waitcnt lgkmcnt({1-h})")
        for i in range(lo, hi): k(f"v_pk_add_f32 {R(BB+2*i,2)}, {R(BB+2*i,2)}, {R(Q+2*i,2)}")
        for i in range(2*lo, 2*hi): k(f"v_sub_f32 v{D+i}, v{D+i}, v{BB+i}")
        for i in range(2*lo, 2*hi): k(f"v_fma_f32 v{D+i}, v{D+i}, v1, v{BB+i}")
        for i in range(lo, hi): k(f"v_cvt_pk_bf16_f32 v{B2+i}, v{D+2*i}, v{D+2*i+1}")
        if h == 0: k.m(f"buffer_store_dwordx4 {R(B2,4)}, v45, {SOUT}, s87 offen {OST()}")
        else: k.m(f"buffer_store_dwordx2 {R(B2+4,2)}, v46, {SOUT}, s72 offen offset:128 {OST()}")

def gemm1c(k, pre_b, post_b, fill):
    ACC = g1.ACC; L = LG(k)
    def reads(g):
        if g > 39: return []
        st, ks = divmod(g, 4); up = (st % 4) >> 1; o = (st & 1) * 32768; f = FR + 16 * (g & 1)
        r = []
        for t in range(2):
            for e in range(2): r.append((f"ds_read_b64_tr_b16 {R(f+4*t+2*e,2)}, v{WA+2*up+t} offset:{o + (16*ks+4*e)*256}", f"A{t}_{g}"))
            r.append((f"ds_read_b128 {R(f+8+4*t,4)}, v{XA+4*up+ks} offset:{o + 4096*t}", f"B{t}_{g}"))
        if X.get("nord") and g > 1: r = [("s_nop 0", t) for _, t in r]
        return r
    pre_b(-1); k("s_barrier")
    for r in reads(0): L(*r)
    post_b(-1)
    for g in range(40):
        st, ks = divmod(g, 4); f = FR + 16 * (g & 1); bar = ks == 3 and st < 9
        def mf(ti, tj):
            a = ACC + 16 * (2*ti + tj); L.wait(f"A{ti}_{g}", f"B{tj}_{g}")
            k(f"v_mfma_f32_32x32x16_bf16 {R(a,16)}, {R(f+4*ti,4)}, {R(f+8+4*tj,4)}, {'0' if g == 0 else R(a,16)}")
        def cs():
            L.wait(f"A0_{g}")
            if not X.get("nocs"): k(f"v_mfma_f32_16x16x32_bf16 v[52:55], v[48:51], {R(f,4)}, {'0' if g == 0 else 'v[52:55]'}")
        rd = reads(g + 1)
        if bar:
            mf(0, 0); L.wait(f"B1_{g}"); pre_b(st); k("s_barrier")
            for r in rd[:3]: L(*r)
            mf(1, 0)
            for r in rd[3:]: L(*r)
            post_b(st); mf(0, 1); fill(g, 2); mf(1, 1); cs()
        else:
            mf(0, 0)
            for r in rd[:3]: L(*r)
            if g == 39: cs()
            mf(1, 0)
            for r in rd[3:]: L(*r)
            mf(0, 1); fill(g, 2)
            if g == 39: k("v_cmp_gt_u32 vcc, 32, v0\nds_write_b32 v14, v52")
            mf(1, 1); fill(g, 3)
            if g < 39: cs()
    k("s_waitcnt lgkmcnt(0)\ns_barrier\nds_read_b32 v53, v15")
    k.wait("st")
    for ti in range(2):
        a = 144 + 4*ti
        if ti: k("s_waitcnt lgkmcnt(0)")
        k(f"""v_cvt_pk_bf16_f32 v{a}, v{52+ti}, v{52+ti}
        v_lshl_or_b32 v{a+2}, v{56+ti}, 16, v{56+ti}
        v_and_b32 v{a}, 0xffff0000, v{a}
        v_cndmask_b32 v{a+2}, 0, v{a+2}, vcc
        v_sub_f32 v{a+1}, v{52+ti}, v{a}
        v_mov_b32 v{a+3}, 0
        v_cvt_pk_bf16_f32 v{a}, v{a}, v{a+1}
        v_mov_b32 v{a+1}, v{a}""")
        for tj in range(2):
            c = ACC + 16 * (2*ti + tj)
            k(f"v_mfma_f32_32x32x16_bf16 {R(c,16)}, {R(a,4)}, {R(64+8*tj,4)}, {R(c,16)}")
            if ti:
                for i in range(6): k(f"v_mov_b32 v{2+6*tj+i}, v{68+8*tj+(i>>1)}")
```

```python
from g2 import *
L_CP, L_HP, L_A1 = 16384, 57344, 118784
def run(k, x): k(x) if isinstance(x, str) else x()
def gload(k):
    k(f"""v_and_b32 v50, 15, v0
    s_lshl2_add_u32 s68, {sTK}, {sW}
    s_lshl_b32 s69, s68, 9
    s_add_u32 s69, s69, {ST}
    v_lshlrev_b32 v1, 5, v50""")
    k.m(f"buffer_load_dword v1, v1, {SWS}, s69 offen offset:28 {SC}", "g")
    k(f"v_and_b32 v47, 48, v0\ns_mul_i32 s79, {sCHT}, 160\ns_mul_i32 s69, {sW}, 5120\ns_add_u32 s69, s69, {L_CP}\nv_add_u32 v2, s69, v{vL16}")
def g2c_setup(k):
    gload(k)
    k(f"v_add_u32 v45, s79, v47\nv_lshrrev_b32 v46, 1, v47\nv_add_u32 v46, s79, v46")
    k.m("global_load_dwordx4 v[14:17], v45, s[26:27]", "b2"); k.m("global_load_dwordx4 v[18:21], v45, s[26:27] offset:64", "b2")
    k.m("global_load_dwordx2 v[22:23], v46, s[26:27] offset:128", "b2")
    k(f"""s_movk_i32 s69, {AP()}
    v_mad_u32_u24 v44, v50, s69, v47
    v_and_b32 v3, 12, v0
    v_mad_u32_u24 v3, v3, s69, v44
    s_mul_i32 s88, {sCHT}, {80*AP()}
    s_lshr_b32 s69, {sTK}, 3
    s_lshl_b32 s69, s69, 10
    s_add_u32 s88, s88, s69
    s_and_b32 s69, s68, 15
    s_lshl_b32 s69, s69, 6
    s_add_u32 s88, s88, s69
    s_add_u32 s88, s88, {AT}
    v_lshlrev_b32 v48, 2, v50
    v_and_b32 v48, 48, v48
    v_cmp_eq_u32 vcc, v48, v47
    v_and_b32 v48, 1, v0
    v_lshlrev_b32 v48, 4, v48
    v_mov_b32 v49, 0x3f80
    v_lshlrev_b32 v48, v48, v49
    v_cndmask_b32 v51, 0, v48, vcc
    s_bfe_u32 s69, {sTK}, 0x10002
    s_lshl_b32 s69, s69, 1
    v_bfe_u32 v50, v0, 1, 1
    v_add_u32 v50, s69, v50
    s_mul_i32 s69, {sW}, 15360
    s_add_u32 s69, s69, {L_HP}
    v_add_u32 v47, s69, v{vL16}""")
    for i in (0, 1): k(f"v_cmp_eq_u32 vcc, {i}, v50\nv_cndmask_b32 v{48+i}, 0, v51, vcc")
    k("v_cmp_eq_u32 vcc, 2, v50\nv_cmp_eq_u32 s[70:71], 3, v50\nv_cndmask_b32 v50, 0, v51, vcc\nv_cndmask_b32 v51, 0, v51, s[70:71]")
def g2c_setup2(k):
    k.wait("b2"); k("v_sub_f32 v45, 1.0, v1")
    for i in range(10): k(f"v_lshlrev_b32 v{4+2*i}, 16, v{14+i}\nv_and_b32 v{5+2*i}, 0xffff0000, v{14+i}")
def g2h_setup(k):
    gload(k)
    k(f"""v_mul_u32_u24 v45, 1280, v50
    v_lshrrev_b32 v46, 1, v47
    v_add_u32 v46, v45, v46
    v_add_u32 v45, v45, v47
    s_mul_i32 s87, s68, 20480
    s_add_u32 s87, s87, s79
    s_mul_i32 s69, {sW}, 15360
    s_add_u32 s69, s69, {L_HP + 5120}
    v_add_u32 v47, s69, v{vL16}
    v_add_u32 v48, {L_A1 - L_CP}, v2""")
def mfs(k, j, s, hq, pend, init, npop, lead, L=None):
    acc = 4 + 20 * (j & 1)
    k.wait(f"h{j}_{s}")
    for c in range(5):
        a = R(acc + 4*c, 4)
        if L: L.wait(c)
        k(f"v_mfma_f32_16x16x32_bf16 {a}, {wf(5*s+c)}, {hf(j, s)}, {'0' if s == 0 and not init else a}")
        if s >= 1 or c >= 2:
            for _ in range(npop):
                if pend: run(k, pend.pop(0))
        if c == (4 if lead == 14 else 1) and hq: hq.pop(0)()
def gemm2c(k, hq, hook, ckb, late):
    pend = []; lead = 28 - len(hq); AF = 52; B2 = W2R; P1 = W2R + 20; D = W2R + 40; U = W2R + 60
    def aloads():
        o = []
        for c in range(5):
            def f(c=c):
                if c: k(f"s_add_u32 s88, s88, {(4 if c & 1 else 28)*AP()}")
                k.m(f"buffer_load_dwordx4 {R(AF+4*c,4)}, v{44 if c == 4 else 3}, {SWS}, s88 offen {SC}", "a")
            o.append(f)
        return o
    for j in range(4):
        for s in range(7):
            hook(7*j + s)
            if j and s == 2:
                assert not pend
                k("s_waitcnt lgkmcnt(0)\ns_barrier"); hook(100 + j - 1)
                if j == 3:
                    if ckb == 2: pend += aloads()
                    pend += [f"ds_read_b128 {R(4+4*c,4)}, v47 offset:{1024*c}" for c in range(5)]
            if ckb == 1 and 7*j + s == max(18, 28 - lead): al = aloads(); pend += al[:4] + ["s_nop 0"] + al[4:]
            if (j, s) == (3, 5): pend += ["s_waitcnt lgkmcnt(0)\n" * (i == 0) + f"v_mul_f32 v{4+i}, v45, v{4+i}" for i in range(20)]
            mfs(k, j, s, hq, pend, j == 0, 2 if j == 3 and s >= 5 else 1, lead)
        if j < 3: pend += [f"ds_write_b128 v2, {R(4+20*(j&1)+4*c,4)} offset:{20480*(j&1)+1024*c}" for c in range(5)]
    assert not pend
    hook(28)
    if not late: k("s_barrier")
    if ckb == 3:
        for f in aloads(): f()
    k(f"v_add_u32 v2, {L_A1 - L_CP}, v2")
    for i in range(20): k(f"v_fmac_f32 v{4+i}, v45, v{24+i}")
    if late == 1: k("s_barrier")
    hook(29); k.wait("a"); hook(30)
    for c in range(5): k(f"v_mfma_f32_16x16x32_bf16 {R(D+4*c,4)}, {R(AF+4*c,4)}, v[48:51], 0")
    for c in range(5):
        for i in range(4*c, 4*c + 4): k(f"v_fmac_f32 v{4+i}, v1, v{D+i}")
        k(f"ds_write_b128 v2, {R(4+4*c,4)} offset:{1024*c}")
    if late == 2: k("s_barrier")
    k("s_waitcnt lgkmcnt(0)\ns_barrier")
def gemm2h(k, hq, hook, q, sb2, sb3):
    pend = []; lead = 28 - len(hq); A1 = W2R; P2 = W2R + 20
    for j in range(4):
        for s in range(7):
            hook(7*j + s); L = None
            if s == 0:
                k("s_waitcnt lgkmcnt(0)\ns_barrier"); L = LG(k)
                for c in range(5): L(f"ds_read_b128 {R(4+20*(j&1)+4*c,4)}, {'v47' if j == 3 else 'v2'} offset:{20480*(j==1)+1024*c}", c)
                p0 = pend; pend = []
                for x in p0[:1]: k(x)
                for x in p0[1:]: L(x)
            if (j, s) == (3, sb3):
                assert not pend
                k("s_waitcnt lgkmcnt(0)\ns_barrier"); hook(103); L2 = LG(k)
                for c in range(5):
                    L2(f"ds_read_b128 {R(A1+4*c,4)}, v48 offset:{1024*c}", c); L2(f"ds_read_b128 {R(P2+4*c,4)}, v47 offset:{5120+1024*c}", c)
                pend = ["v_sub_f32 v1, 1.0, v1"]
                for c in range(5): pend += [lambda c=c: L2.wait(c)] + [f"v_fmac_f32 v{A1+i}, v1, v{P2+i}" for i in range(4*c, 4*c + 4)]
            if j == 0 and s == 1: pend = [q.pop] * len(q.q)
            mfs(k, j, s, hq, pend, True, 2 if j == 3 and s > sb3 else 0 if (j, s) == (3, sb3) else 1, lead, L)
        assert j == 3 or not pend
        if j < 3:
            pend.append(f"s_add_u32 s66, {sW}, {1+j}\ns_and_b32 s66, s66, 3\ns_mul_i32 s66, s66, 15360\ns_add_u32 s66, s66, {L_HP}\nv_add_u32 v3, s66, v{vL16}")
            pend += [f"ds_write_b128 v3, {R(4+20*(j&1)+4*c,4)} offset:{5120*j+1024*c}" for c in range(5)]
    while pend: run(k, pend.pop(0))
    hook(28)
    for lo, hi, n, v in ((0, 4, 4, 45), (4, 8, 4, 45), (8, 10, 2, 46)):
        for i in range(2*lo, 2*hi): k(f"v_fmac_f32 v{A1+i}, v1, v{24+i}")
        for i in range(lo, hi): k(f"v_cvt_pk_bf16_f32 v{4+i}, v{A1+2*i}, v{A1+2*i+1}")
        k.m(f"buffer_store_dwordx{n} {R(4+lo,n)}, v{v}, {SOUT}, s87 offen offset:{16*lo} {OST()}")
```

```python
from g3 import *
import haz
def sched(lines, lv=3, lt=5, ld=5):
    I = [haz.I(l) for l in lines]; n = len(I); pre = [[] for _ in I]; suc = [[] for _ in I]
    for j in range(n):
        for i in range(j):
            raw = I[i].w & I[j].r
            if raw or (I[i].w & I[j].w) or (I[i].r & I[j].w):
                l = (ld if I[j].ds else lt if I[i].trans else lv) if raw else 1
                pre[j].append((i, l)); suc[i].append((j, l))
    h = [0] * n
    for i in range(n - 1, -1, -1): h[i] = max([l + h[j] for j, l in suc[i]] + [0])
    at = {}; t = 0; out = []; lastds = -9
    while len(out) < n:
        c = [(max([at[i] + l for i, l in pre[j]] + [0]), j) for j in range(n) if j not in at and all(i in at for i, _ in pre[j])]
        r = [j for e, j in c if e <= t]
        d = [j for j in r if I[j].ds]; v = [j for j in r if not I[j].ds]
        if d and (t - lastds >= 4 or not v): j = d[0]; lastds = t
        elif v:
            cv = [j for j in v if I[j].mn.startswith("v_cvt_pk")]
            j = cv[0] if cv and not d and t - lastds >= 2 else max(v, key=lambda j: (h[j], -j))
        else: t += 1; continue
        at[j] = t; out.append(lines[j]); t += 2 if I[j].trans else 1
    return out, t
TVL = list(range(12, 52)) + list(range(80, 99))
def kA2(k, lv=3, direct=1):
    W = []
    L2E = 1.4426950408889634
    hi = struct.unpack("<f", struct.pack("<f", L2E))[0]; lo = L2E - hi
    lar, aim, cr, ci, ldt, dsk = range(KP, KP + 6)
    S = []; o = lambda s: S.extend(l.strip() for l in s.split("\n"))
    k(f"s_mov_b32 s66, {F(hi)}")
    ow = o if direct else W.append
    ow(f"ds_write_b32 v52, v58 offset:{30*TROW}")
    for r in range(KP, KP + 6): o(f"v_lshlrev_b32 v{r}, 16, v{r}")
    for r, t in ((lar, 2), (ldt, 4)):
        o(f"""v_mul_f32 v{t}, s66, v{r}
        v_fma_f32 v{t+1}, v{r}, s66, -v{t}
        v_exp_f32 v{t}, v{t}
        v_fmac_f32 v{t+1}, {F(lo)}, v{r}
        v_mul_f32 v{t+1}, {F(0.6931471805599453)}, v{t+1}
        v_fmac_f32 v{t}, v{t}, v{t+1}
        v_cvt_pk_bf16_f32 v{t}, v{t}, v{t}
        v_and_b32 v{r}, 0xffff0000, v{t}""")
    A = [176 + 4*j for j in range(5)]
    o(f"""v_mul_f32 v2, v{lar}, v{ldt}
    v_mul_f32 v3, v{aim}, v{ldt}
    v_mul_f32 v2, {F(-L2E)}, v2
    v_mul_f32 v3, 0.15915494, v3
    v_add_f32 v{ldt}, v{ldt}, v{ldt}
    v_mul_f32 v{A[0]}, v{cr}, v{ldt}
    v_mul_f32 v{A[0]+2}, v{ci}, v{ldt}""")
    def ex(r, i, p, t):
        o(f"""v_mul_f32 v{t+1}, {F(p)}, v3
        v_mul_f32 v{t}, {F(p)}, v2
        v_fract_f32 v{t+1}, v{t+1}
        v_exp_f32 v{t}, v{t}
        v_cos_f32 v{t+2}, v{t+1}
        v_sin_f32 v{t+3}, v{t+1}""")
        for x in r: o(f"v_mul_f32 v{x}, v{t+2}, v{t}")
        for x in i: o(f"v_mul_f32 v{abs(x)}, v{t+3}, {'-' if x < 0 else ''}v{t}")
    E1, E16, E256, E4 = 6, 12, 18, 24
    B = [196 + 4*j for j in range(3)]
    dup = lambda e: ([e, e + 1], [e + 2, e + 3, -(e + 4), -(e + 5)])
    r, i = dup(E16); ex(r + [B[0] + 1], i + [B[0] + 3], 16.0, 28); ex([B[0]], [B[0] + 2], 8.0, 32)
    ex([E4], [E4 + 1], 4.0, 36); ex(*dup(E1), 1.0, 40); ex(*dup(E256), 256.0, 44)
    a = A[0]
    o(f"""v_mul_f32 v26, v{a+2}, v{E4+1}
    v_mul_f32 v27, v{a+2}, v{E4}
    v_fma_f32 v{a+1}, v{a}, v{E4}, -v26
    v_fma_f32 v{a+3}, v{a}, v{E4+1}, v27""")
    tc = [0]
    def pcm(d, x, e):
        t = 208 + 4 * (tc[0] % 4); tc[0] += 1
        o(f"""v_pk_mul_f32 {R(t,2)}, {R(x+2,2)}, {R(e+4,2)}
        v_pk_mul_f32 {R(t+2,2)}, {R(x+2,2)}, {R(e,2)}
        v_pk_fma_f32 {R(d,2)}, {R(x,2)}, {R(e,2)}, {R(t,2)}
        v_pk_fma_f32 {R(d+2,2)}, {R(x,2)}, {R(e+2,2)}, {R(t+2,2)}""")
    def row(hh, s):
        rho = 8 * (s >> 2) + 4 * hh + (s & 3)
        return rho - (rho > 27)
    nv = [0]
    def put(x, rw, neg):
        v = TV + nv[0]; nv[0] += 1
        o(f"v_cvt_pk_bf16_f32 v{v}, v{x}, {'-' if neg else ''}v{x+2}")
        for r in rw: ow(f"ds_write_b32 v52, v{v} offset:{r*TROW}")
    SA = []
    def l0(j):
        if j: pcm(A[j], A[j-1], E1)
        for jj, x in ((j, A[j]), (j + 4, A[j] + 1)):
            if (j, jj) != (4, 4): put(x, [row(hh, jj - 4*hh) for hh in (0, 1) if 0 <= jj - 4*hh <= 4], 1)
    for j in range(5): SA.append(lambda j=j: l0(j))
    C = [224, 228, 232]; D = [236, 240]
    def l1(m):
        pcm(C[m], A[2*m], E256)
        for j, x in ((m, C[m]), (m + 2, C[m] + 1)):
            if (m, j) != (2, 2): put(x, [row(hh, 5 + j - 2*hh) for hh in (0, 1) if 0 <= j - 2*hh <= 2], 1)
    for m in range(3): SA.append(lambda m=m: l1(m))
    def l2(hh, m):
        s, d = ((C[0], C[2]), D)[hh][m], (D, (A[0], A[1]))[hh][m]
        pcm(d, s, E256)
        if m == 0: put(d, [row(hh, 8)], 1)
        put(d + 1, [row(hh, 9 + m)], 1)
        if hh and m: o(f"v_mov_b32 v{d}, v{A[0]}\nv_mov_b32 v{d+2}, v{A[0]+2}")
    for hh in (0, 1):
        for m in (0, 1): SA.append(lambda hh=hh, m=m: l2(hh, m))
    def l3(q):
        d = A[1 + (q + 1) % 4]; pcm(d, A[1 + q], E256)
        for j in (0, 1): put(d + j, [row(q & 1, 11 + 2*(q >> 1) + j)], 1)
    for q in range(4): SA.append(lambda q=q: l3(q))
    for m in range(16):
        if m: pcm(B[m % 3], B[(m - 1) % 3], E16)
        put(B[m % 3], [31 + 2*m], 0)
        if m < 15: put(B[m % 3] + 1, [32 + 2*m], 0)
        SA.pop(0)()
    out, t = sched(S, lv)
    if X.get("v"): print("kA2", len(out), t)
    if not direct:
        f = lambda n: n + 114 if 2 <= n < 48 else TVL[n - TV] if TV <= n < TV + 59 else n
        g = lambda t: re.sub(r"\bv(\d+)\b", lambda m: f"v{f(int(m[1]))}", re.sub(r"\bv\[(\d+):(\d+)\]", lambda m: f"v[{f(int(m[1]))}:{f(int(m[2]))}]", t))
        out = [g(l) for l in out]; W = [g(l) for l in W]
    for l in out: k(l)
    return W
```

```python
from gen import *
from g4 import *
g1.vXO, g1.vWO, g1.ACC, g1.GT = 108, 112, 80, 16
SDB = "s[92:95]"
S1C, S2C = 512, 768
def stamp(k, n, on, m=1):
    if on and (on == m or n in (0, 12, 13)): k(f"s_memrealtime s[96:97]\ns_memtime s[18:19]\ns_waitcnt lgkmcnt(0)\nv_writelane_b32 v{vTS}, s96, {n}\nv_writelane_b32 v{vTS}, s18, {n+16}")
def poll_setup(k, nl, target, w=sW, sh=8):
    k(f"s_cmp_eq_u32 {w}, 0\ns_cselect_b32 s89, {nl}, 0" if w else f"s_mov_b32 s89, {nl}")
    k(f"""v_cmp_gt_u32 s[90:91], s89, v0
    v_lshlrev_b32 v{vPO}, {sh}, v0
    v_mov_b32 v{vPE}, {OOB}
    v_cndmask_b32 v{vPO}, v{vPE}, v{vPO}, s[90:91]
    v_cndmask_b32 v{vPE}, 0, {target}, s[90:91]""")
def poll_issue(k, srd, so): k.m(f"buffer_load_dword v{vPG}, v{vPO}, {srd}, {so} offen sc1", "poll")
def poll_check(k, srd, so):
    l, d = k.label("sp"), k.label("sd")
    k.wait("poll")
    k(f"""s_mov_b32 s89, 0x20000
    {l}:
    v_cmp_ne_u32 s[90:91], v{vPE}, v{vPG}
    s_sub_u32 s89, s89, 1
    s_cselect_b64 s[90:91], 0, s[90:91]
    s_cmp_eq_u64 s[90:91], 0
    s_cbranch_scc1 {d}
    {f"s_sleep {X['sl']}" if X.get('sl') else 's_nop 0'}
    buffer_load_dword v{vPG}, v{vPO}, {srd}, {so} offen sc1
    s_waitcnt vmcnt(0)
    s_branch {l}
    {d}:""")
def signal(k, so, tag="sig"): k.m(f"buffer_atomic_add v{vS1}, v{vSO}, {SWS}, {so} offen sc1", tag)
def sigregs(k, r):
    k(f"""v_cmp_gt_u32 s[90:91], {r}, v0
    v_mov_b32 v{vS1}, {OOB}
    v_lshlrev_b32 v{vSO}, 8, v0
    v_cndmask_b32 v{vSO}, v{vS1}, v{vSO}, s[90:91]
    v_mov_b32 v{vS1}, 1""")
def lineoff(k, d, reg, r, base, sel=None):
    k(f"s_mul_i32 {d}, {reg}, {r}\ns_add_u32 {d}, {d}, {base}")
    if sel and r > 1: k(f"s_and_b32 s89, {sel}, {r-1}\ns_add_u32 {d}, {d}, s89")
    k(f"s_lshl_b32 {d}, {d}, 8")
def sigoff(k, reg, r, base, w):
    lineoff(k, "s98", reg, r, base)
    if w: k(f"s_cmp_eq_u32 {w}, 0\ns_cselect_b32 s98, s98, {OOB}")
def l2pre(k, m):
    a = 1 if m == 1 else 0
    k(f"""v_lshrrev_b32 v244, {a}, v0
    v_mul_u32_u24 v244, 1280, v244
    v_lshrrev_b32 v245, {a+1}, v0
    v_mul_u32_u24 v245, {16*3456}, v245
    v_and_b32 v246, {2*a+1}, v0
    v_lshl_add_u32 v245, v246, {7-a}, v245
    v_and_b32 v246, {a}, v0
    v_lshl_add_u32 v244, v246, 6, v244
    s_lshl2_add_u32 s90, {sRB}, {sW}
    s_mul_i32 s89, s90, 40960
    s_cmp_ge_u32 {sCT}, 7
    s_cselect_b32 s91, 7, 0
    s_sub_u32 s91, {sCT}, s91
    s_lshl_b32 s91, s91, 7
    s_add_u32 s89, s89, s91
    s_and_b32 s90, s90, 15
    s_mul_i32 s90, s90, 3456
    s_lshl_b32 s91, {sCT}, 8
    s_add_u32 s90, s90, s91
    s_add_u32 s90, s90, {128*3456}""")
    k.m(f"buffer_load_dword v246, v245, {SW1}, s90 offen", "l2")
    if a: k(f"s_add_u32 s90, s90, {256*3456}")
    else: k("s_mov_b32 exec_hi, 0")
    k.m(f"buffer_load_dword v246, v244, {SU}, s89 offen offset:256", "l2")
    if a: k.m(f"buffer_load_dword v246, v245, {SW1}, s90 offen", "l2")
    else: k("s_mov_b32 exec_hi, -1")
def w2pre_addr(k, m):
    k(f"""v_lshrrev_b32 v60, 1, v0
    v_mul_u32_u24 v61, 52, v60
    v_lshrrev_b32 v61, 8, v61
    v_mul_u32_u24 v61, {40960-5120}, v61
    v_lshl_add_u32 v60, v60, 10, v61
    v_and_b32 v61, 1, v0
    v_lshl_add_u32 v60, v61, 7, v60
    s_and_b32 s87, {sTK}, 3
    s_lshl_b32 s87, s87, 8
    s_add_u32 s87, s87, s85
    s_sub_u32 s88, s87, {4*5120}""")
def w2pre(k, m):
    return [lambda so=so: k.m(f"buffer_load_dword v61, v60, {SWS}, {so} offen {SC}", "l2") for so in (("s87", "s88")[:m] if m < 3 else ["s88"])]
BAR = "s_waitcnt lgkmcnt(0)\ns_barrier"
def v3(ts=0, pf=1, hb=24, sg0=2, ck0=6, whw=9, wg=1, m1=8, nb=8, mb=7, cr=0, n0=4, dc=10, dh=10, sgb=0, ckb=2, pi2=19, sb2=3, sb3=4, pk=0, pkf=0, prc=0, prh=0, np_=3, pr2=0, r0=8, r1=8, r2=4, l2=0, l2p=0, w2p=0, wd=0, ka2=3, kb=0, l2i=200, late=1, wp=8, wg0=0, d0=32, b0i=26, kst=6, kpa=14, kpb=6, kbn=0, nk=7, pd=2, nbw=0, fb=3, fst=12, kl=0, dw=16, sgf=0, foob=1, bx=0):
    k = G(NAME + "_kernel", vgpr=256, sgpr=102, accum=256); n = k.name
    prologue(k, pf, 1)
    isF = f"s_cmp_ge_u32 {sI}, 28\ns_cbranch_scc1 {n}"
    def srd2():
        srds(k); k("s_mov_b64 s[92:93], s[32:33]"); stamp(k, 0, ts)
    def p0(q, w): poll_setup(q, 8, 32, w, 8 + r0.bit_length() - 1); q(f"s_and_b32 s89, s2, {r0-1}\ns_lshl_b32 s89, s89, 8\nv_add_u32 v{vPO}, s89, v{vPO}")
    k(f"s_mov_b32 s94, 256\ns_mov_b32 s95, 0x20000\ns_cmp_eq_u32 {sG}, 0\ns_cbranch_scc1 {n}_c0")
    vm0 = list(k.vm)
    if prh: k(f"s_setprio {prh}")
    k(f"{isF}_fh")
    g1_addr(k); kaddr(k); srd2()
    q = Rec(k); w2_setup(q); q(f"s_mov_b32 {sKD}, {L_KD}"); kaddr2(q)
    bg = Rec(k); bg.wait("kp"); kBq = kA2(bg, ka2, 0); cv_setup(bg); cv_x(bg, 0, 4096)
    for i, f in enumerate(sum((g1_dma(k, st) for st in range(4)), [])[:d0]):
        if i == kl: kload(k, 0)
        if i == hb: k("s_barrier")
        if i == b0i: k.wait("g0"); stamp(k, 1, ts, 2); k("s_barrier"); stamp(k, 1, ts)
        f()
        if i >= 2: q.pop(2)
        if i >= kst: q.flush(); bg.pop(kpa)
    dq = g1_dma(k, 3)[d0 - 24:]
    wqH = w2_loads(k, 0, 17); wqH0 = list(wqH)
    for b in range(1, 10):
        stamp(k, b + 1, ts, 2)
        k.wait(f"g{b}")
        stamp(k, b + 1, ts, 3)
        if b == ck0: stamp(k, 2, ts)
        if b == 8: stamp(k, 4, ts)
        k("s_barrier")
        if b == ck0: stamp(k, 3, ts)
        if b <= 6: dq += g1_dma(k, b + 3)
        it = [dq.pop(0) for _ in range(min(len(dq), dw))]
        if b == ck0: assert not bg.q; it += [lambda: uload(k)]
        if b >= ck0 + wd and not dq: it += [wqH.pop(0) for _ in range(min(len(wqH) - 2, max(0, whw - len(it))))]
        if b >= 8:
            for _ in range(min(kbn, len(kBq))): bg(kBq.pop(0))
        for f in it: f(); bg.pop(kpb if b < 8 else -(-kbn // len(it)))
        if b >= 8: bg.flush()
    assert not dq
    k("s_barrier")
    for x in kBq: bg(x)
    while len(wqH) > max(cr, 2): wqH.pop(0)(); bg.pop(4)
    bg.flush(); cv_u(k); stamp(k, 1, ts, 6); k(BAR); stamp(k, 2, ts, 6)
    kC(k, slots=(32, 40, 76, 84, 92, 100)); stamp(k, 3, ts, 6)
    k(f"{n}_hc:")
    preH = len(wqH0) - len(wqH)
    while len(wqH) > cr: wqH.pop(0)()
    stamp(k, 5, ts); k(BAR); stamp(k, 6, ts)
    cv_main(k, lambda i, m: wqH.pop(0)() if wqH and (36*i + m) % 7 == 6 else None)
    while wqH: wqH.pop(0)()
    stamp(k, 7, ts); k(BAR)
    def s2pre(): k(f"s_lshl2_add_u32 s97, {sX}, {sW}"); sigoff(k, "s97", r2, S2C, None); sigregs(k, r2)
    cv_fin(k, s2pre); g2h_setup(k); q = Rec(k)
    def s2sig(c, l):
        k(f"s_cmp_ge_u32 {sI}, {sgf}\ns_cbranch_scc{c} {n}_{l}"); k.wait("ast"); signal(k, "s98", "~s"); k(f"{n}_{l}:")
    s2sig(1, "sa"); k("s_barrier"); stamp(k, 8, ts)
    if pr2: k(f"s_setprio {pr2}")
    hq = h_loads(k)
    while len(hq) > 28 - dh:
        if len(hq) == 28 - n0: s2sig(0, "sb")
        hq.pop(0)()
    if pr2: k("s_setprio 0")
    T5 = (0, 1, 7, 9, 14, 16, 21, 23, 28, 29, 30)
    def hookh(i):
        if i in T5: stamp(k, T5.index(i) + 1, ts, 5)
        if i == 103: stamp(k, 10, ts, 5)
        if i in (1, 21 + sb3, 103): stamp(k, 9 + (1, 21 + sb3, 103).index(i), ts)
    gemm2h(k, hq, hookh, q, sb2, sb3)
    k(f"s_branch {n}_{'fin' if ts else 'end'}\n{n}_fh:")
    k.vm = list(vm0)
    side_addr(k); kaddr(k); srd2(); side_load(k); kload(k, 0); sigregs(k, r0); side_addr2(k); poll_setup(k, 1, 1); w2_setup(k); sigoff(k, sX, r0, 0, sW)
    k(f"s_mov_b32 {sKD}, 0\ns_mov_b32 {sCNT}, 1\ns_mov_b32 s81, 0")
    k.wait0(); k("s_barrier"); stamp(k, 1, ts)
    side_do(k); poll_issue(k, SDB, "0")
    k("s_barrier"); k.wait("sst"); poll_check(k, SDB, "0"); k("s_barrier"); signal(k, "s98")
    p0(k, None); kaddr2(k, 0); k(f"s_barrier\ns_branch {n}_f2\n{n}_f3:")
    k.vm = []; stamp(k, 2, ts)
    poll_issue(k, SWS, "0")
    k(f"""s_cmp_eq_u32 {sG}, 0
    s_cselect_b32 {sKD}, {KPAIR}, 0
    s_cselect_b32 s81, {81920 - L_U}, 0
    s_cselect_b32 {sCNT}, 16384, 0
    s_addc_u32 {sPAIR}, {sPAIR}, 0""")
    cv_setup(k); cv_x(k, 40960, 4096)
    for i in (1, 2, 3): k(f"v_add_u32 v{i}, s81, v{i}")
    for i in (9, 10): k(f"v_add_u32 v{i}, {sCNT}, v{i}")
    poll_check(k, SWS, "0")
    stamp(k, 3, ts); uload(k, 168)
    k(f"s_cmp_eq_u32 {sG}, 0\ns_cselect_b64 vcc, -1, 0")
    fq = wqH0[:preH]
    def honly(fs):
        l = k.label("ho"); k(f"s_cbranch_vccnz {l}")
        for f in fs: f()
        k(f"{l}:")
    cv_u(k, 168); stamp(k, 4, ts); k(BAR)
    honly([lambda: k(f"s_add_u32 {sPAIR}, {sPAIR}, 2"), lambda: uload(k, 168)])
    cv_main(k, lambda i, m: honly([fq.pop(0) for _ in range(min(fb, len(fq)))]) if fq and (36*i + m) % fst == 1 else None); assert not fq
    k(BAR); cv_fin(k)
    k(f"s_cbranch_vccnz {n}_f4")
    for i in range(4, 8): k(f"v_add_u32 v{i}, {L_KD}, v{i}")
    cv_x(k, 0, 4096); cv_u(k, 168)
    k(f"s_branch {n}_hc\n{n}_c0:")
    k.vm = list(vm0)
    if prc: k(f"s_setprio {prc}")
    def cpre():
        sigregs(k, r0); w2_setup(k); lineoff(k, "s99", sTK, r1, S1C, sCHT)
    k(f"{isF}_fc")
    r = Rec(k, 160); side_addr(r); r.flush()
    k(f"""s_or_b32 s66, s2, {sW}
    s_cmp_eq_u32 s66, 0
    s_cselect_b32 s98, 0, {OOB}
    v_lshlrev_b32 v{vPO}, 8, v0
    v_mov_b32 v{vPE}, 0""")
    srd2()
    k(f"s_cmp_lg_u32 s98, 0\ns_cbranch_scc1 {n}_nz")
    for l in list(range(64, 8*r0, 64)) + list(range(S1C, S1C + 32*r1, 64)) + list(range(S2C, S2C + 32*r2, 64)):
        k(f"s_mov_b32 s66, {l*256}"); k.m(f"buffer_store_dword v{vPE}, v{vPO}, {SWS}, s66 offen sc1", "~z")
    k(f"{n}_nz:")
    k.m(f"buffer_store_dword v{vPE}, v{vPO}, {SWS}, s98 offen sc1", "zero")
    side_load(r); r.flush()
    if l2 and l2p == 0: l2pre(k, l2)
    cpre()
    gemm1_setup(k); gemm1_sel(k); gemm1_setup2(k); side_addr2(r); r.flush(); poll_setup(k, 1, 1)
    k.wait("zero")
    k.m(f"buffer_store_dword v{vS1}, v{vSO}, {SDB}, s98 offen sc1", "sig")
    sigoff(k, sX, r0, 0, sW)
    if l2 and l2p == 1: l2pre(k, l2)
    k.wait("side"); k("s_barrier"); stamp(k, 1, ts, 2)
    if sg0 == 0: poll_issue(k, SDB, "0")
    side_do(r); r.flush(); stamp(k, 1, ts, 3)
    if l2 and l2p == 3: l2pre(k, l2)
    r = Rec(k)
    def pre_b(st):
        stamp(k, st + 2, ts, 3)
        if st + 1 == sg0: r.flush(); k.wait("sst"); poll_check(k, SDB, "0")
        if st + 1 == ck0: r.flush(); poll_check(k, SWS, "0")
    def post_b(st):
        stamp(k, st + 2, ts, 2)
        if st in (2, 5, 6, 7): stamp(k, st + 2, ts, 4)
        if st == 0: stamp(k, 1, ts)
        if st == 4: stamp(k, 2, ts)
        if st == 8: stamp(k, 3, ts)
        if st + 2 == sg0: poll_issue(r, SDB, "0")
        if st + 1 == sg0: signal(k, "s98"); p0(r, sW)
        if st + 1 + pd == ck0: poll_issue(r, SWS, "0")
        if st + 1 == ck0: stats_load(r); poll_setup(r, 1, 28); sigoff(r, "s81", r1, S1C, None); sigregs(r, r1)
    gemm1c(k, pre_b, post_b, lambda g, i: r.pop())
    assert not r.q
    stamp(k, 4, ts)
    wqC = w2_loads(k, 0, 9); wqC0 = list(wqC)
    def gf(i):
        if i in (nk, nb): k("s_barrier")
        for _ in range(wg if i >= wg0 else 0): wqC.pop(0)()
    gelu(k, gf)
    assert len(wqC) >= 9
    preC = len(wqC0) - len(wqC); vm = list(k.vm)
    k(f"s_branch {n}_cc\n{n}_fc:")
    k.vm = list(vm0)
    kaddr(k); srd2(); kload(k, 2); kload(k, 1, 80); cpre()
    k(f"s_mov_b32 {sKD}, {L_KD}\ns_mov_b32 {sCNT}, 2\ns_mov_b32 s98, {OOB}\ns_mov_b32 s81, {KPAIR - L_KD}")
    kaddr2(k); p0(k, None); k.wait0(); k("s_barrier"); stamp(k, 1, ts)
    k(f"{n}_f2:")
    stamp(k, 2, ts, 6); kA2(k, ka2); stamp(k, 3, ts, 6); k(BAR); stamp(k, 4, ts, 6); kC(k, lambda j: k("s_barrier") if j == 15 else None); stamp(k, 5, ts, 6)
    for i in range(6): k(f"v_mov_b32 v{KP+i}, v{80+i}")
    k(BAR)
    for i in range(55, 58): k(f"v_add_u32 v{i}, s81, v{i}")
    k(f"s_sub_u32 {sCNT}, {sCNT}, 1\ns_cmp_lg_u32 {sCNT}, 0\ns_cbranch_scc1 {n}_f2\ns_branch {n}_f3\n{n}_f4:")
    k("s_barrier"); poll_setup(k, 1, 28)
    for f in wqC0[:preC]: f()
    k.vm = vm
    k(f"{n}_cc:")
    stamp(k, 5, ts)
    for _ in range(m1): wqC.pop(0)()
    k.wait("hst"); signal(k, "s98"); stamp(k, 6, ts)
    q = Rec(k); g2c_setup(q); nw0 = len(wqC)
    while wqC:
        if nb == 8 and len(wqC) == nw0 - nbw: k(f"{isF}_nb\ns_barrier\n{n}_nb:")
        if len(wqC) == bx: k("s_barrier")
        wqC.pop(0)(); q.pop(2)
    q.flush()
    poll_issue(k, SWS, "s99"); g2c_setup2(k)
    if bx == 0: k("s_barrier")
    poll_check(k, SWS, "s99")
    if prc: k("s_setprio 0")
    stamp(k, 7, ts); k("s_barrier"); stamp(k, 8, ts)
    hq = h_loads(k)
    for i in range(dc): hq.pop(0)()
    poll_setup(k, 2, 32, sW, 8 + r2.bit_length())
    k(f"s_lshr_b32 s97, {sTK}, 4\ns_lshl2_add_u32 s97, {sCHT}, s97"); lineoff(k, "s99", "s97", r2, S2C, sTK)
    def hookc(i):
        if i in T5: stamp(k, T5.index(i) + 1, ts, 5)
        if i == 1: stamp(k, 9, ts)
        if i == pi2: poll_issue(k, SWS, "s99")
        if i == (0, 16, 23, 28)[ckb]: stamp(k, 10, ts); poll_check(k, SWS, "s99"); stamp(k, 11, ts)
    gemm2c(k, hq, hookc, ckb, late)
    k(f"{n}_fin:")
    if ts:
        stamp(k, 12, ts); k.wait0(); stamp(k, 13, ts)
        k(f"""s_lshl3_add_u32 s66, s2, {sW8}
        s_lshl_b32 s66, s66, 7
        s_add_u32 s66, s66, 0x40000
        v_lshlrev_b32 v1, 2, v0
        s_mov_b32 exec_hi, 0
        buffer_store_dword v{vTS}, v1, {SWS}, s66 offen""")
        if X.get("dbg"):
            g = X["dbg"] - 1
            k(f"""s_mov_b32 exec_lo, 1
            v_not_b32 v2, v{vTS}
            buffer_atomic_umax v2, v1, {SDB}, 0 offen offset:4 sc1
            s_cmp_ge_u32 {sI}, 28
            s_cselect_b32 s66, 2, 0
            s_add_u32 s66, s66, {sG}
            s_cmp_eq_u32 s66, {g & 3}
            s_cselect_b32 s66, 0, {OOB}
            s_mov_b32 exec_lo, 0x3fff
            buffer_atomic_{'umax' if g & 4 else 'add'} v{vTS}, v1, {SDB}, s66 offen offset:8 sc1""")
    fin(k)
    return build(HDR + ["; @launch grid=(256,1,1) block=(512,1,1) lds=163840"], [k])
```

```python
from gen import *
from g4 import *
g1.vXO, g1.vWO, g1.ACC, g1.GT = 108, 112, 80, 16
SDB = "s[92:95]"
S1C, S2C = 512, 768
def stamp(k, n, on, m=1):
    if on and (on == m or n in (0, 12, 13) or (on == 7 and m == 1 and n in (5, 8))): k(f"s_memrealtime s[96:97]\ns_memtime s[18:19]\ns_waitcnt lgkmcnt(0)\nv_writelane_b32 v{vTS}, s96, {n}\nv_writelane_b32 v{vTS}, s18, {n+16}")
def poll_setup(k, nl, target, w=sW, sh=8):
    k(f"s_cmp_eq_u32 {w}, 0\ns_cselect_b32 s89, {nl}, 0" if w else f"s_mov_b32 s89, {nl}")
    k(f"""v_cmp_gt_u32 s[90:91], s89, v0
    v_lshlrev_b32 v{vPO}, {sh}, v0
    v_mov_b32 v{vPE}, {OOB}
    v_cndmask_b32 v{vPO}, v{vPE}, v{vPO}, s[90:91]
    v_cndmask_b32 v{vPE}, 0, {target}, s[90:91]""")
def poll_issue(k, srd, so): k.m(f"buffer_load_dword v{vPG}, v{vPO}, {srd}, {so} offen sc1", "poll")
def poll_check(k, srd, so):
    l, d = k.label("sp"), k.label("sd")
    k.wait("poll")
    k(f"""s_mov_b32 s89, 0x20000
    {l}:
    v_cmp_ne_u32 s[90:91], v{vPE}, v{vPG}
    s_sub_u32 s89, s89, 1
    s_cselect_b64 s[90:91], 0, s[90:91]
    s_cmp_eq_u64 s[90:91], 0
    s_cbranch_scc1 {d}
    {f"s_sleep {X['sl']}" if X.get('sl') else 's_nop 0'}
    buffer_load_dword v{vPG}, v{vPO}, {srd}, {so} offen sc1
    s_waitcnt vmcnt(0)
    s_branch {l}
    {d}:""")
def signal(k, so, tag="sig"): k.m(f"buffer_atomic_add v{vS1}, v{vSO}, {SWS}, {so} offen sc1", tag)
def sigregs(k, r):
    k(f"""v_cmp_gt_u32 s[90:91], {r}, v0
    v_mov_b32 v{vS1}, {OOB}
    v_lshlrev_b32 v{vSO}, 8, v0
    v_cndmask_b32 v{vSO}, v{vS1}, v{vSO}, s[90:91]
    v_mov_b32 v{vS1}, 1""")
def lineoff(k, d, reg, r, base, sel=None):
    k(f"s_mul_i32 {d}, {reg}, {r}\ns_add_u32 {d}, {d}, {base}")
    if sel and r > 1: k(f"s_and_b32 s89, {sel}, {r-1}\ns_add_u32 {d}, {d}, s89")
    k(f"s_lshl_b32 {d}, {d}, 8")
def sigoff(k, reg, r, base, w):
    lineoff(k, "s98", reg, r, base)
    if w: k(f"s_cmp_eq_u32 {w}, 0\ns_cselect_b32 s98, s98, {OOB}")
def l2pre(k, m):
    a = 1 if m == 1 else 0
    k(f"""v_lshrrev_b32 v244, {a}, v0
    v_mul_u32_u24 v244, 1280, v244
    v_lshrrev_b32 v245, {a+1}, v0
    v_mul_u32_u24 v245, {16*3456}, v245
    v_and_b32 v246, {2*a+1}, v0
    v_lshl_add_u32 v245, v246, {7-a}, v245
    v_and_b32 v246, {a}, v0
    v_lshl_add_u32 v244, v246, 6, v244
    s_lshl2_add_u32 s90, {sRB}, {sW}
    s_mul_i32 s89, s90, 40960
    s_cmp_ge_u32 {sCT}, 7
    s_cselect_b32 s91, 7, 0
    s_sub_u32 s91, {sCT}, s91
    s_lshl_b32 s91, s91, 7
    s_add_u32 s89, s89, s91
    s_and_b32 s90, s90, 15
    s_mul_i32 s90, s90, 3456
    s_lshl_b32 s91, {sCT}, 8
    s_add_u32 s90, s90, s91
    s_add_u32 s90, s90, {128*3456}""")
    k.m(f"buffer_load_dword v246, v245, {SW1}, s90 offen", "l2")
    if a: k(f"s_add_u32 s90, s90, {256*3456}")
    else: k("s_mov_b32 exec_hi, 0")
    k.m(f"buffer_load_dword v246, v244, {SU}, s89 offen offset:256", "l2")
    if a: k.m(f"buffer_load_dword v246, v245, {SW1}, s90 offen", "l2")
    else: k("s_mov_b32 exec_hi, -1")
def w2pre_addr(k, m):
    k(f"""v_lshrrev_b32 v60, 1, v0
    v_mul_u32_u24 v61, 52, v60
    v_lshrrev_b32 v61, 8, v61
    v_mul_u32_u24 v61, {40960-5120}, v61
    v_lshl_add_u32 v60, v60, 10, v61
    v_and_b32 v61, 1, v0
    v_lshl_add_u32 v60, v61, 7, v60
    s_and_b32 s87, {sTK}, 3
    s_lshl_b32 s87, s87, 8
    s_add_u32 s87, s87, s85
    s_sub_u32 s88, s87, {4*5120}""")
def w2pre(k, m):
    return [lambda so=so: k.m(f"buffer_load_dword v61, v60, {SWS}, {so} offen {SC}", "l2") for so in (("s87", "s88")[:m] if m < 3 else ["s88"])]
BAR = "s_waitcnt lgkmcnt(0)\ns_barrier"
def v3(ts=0, pf=1, hb=24, sg0=3, ck0=7, whw=11, wg=1, m1=3, nb=8, mb=7, cr=0, n0=0, dc=10, dh=10, sgb=0, ckb=2, pi2=19, sb2=3, sb3=5, pk=0, pkf=0, prc=0, prh=0, np_=3, pr2=0, r0=8, r1=8, r2=4, l2=0, l2p=0, w2p=0, wd=0, ka2=3, kb=0, l2i=200, late=1, wp=8, wg0=0, d0=32, b0i=26, kst=6, kpa=14, kpb=6, kbn=0, nk=7, pd=2, nbw=0, fb=3, fst=12, f5=4, f6=0, e=0, pe=0, bc=-3, hn=0, sh=0, c2=16, fx=0, zf=1, fw=1, pr3=0, kl=0, dw=16, sgf=0, foob=1, bx=0):
    k = G(NAME + "_kernel", vgpr=256, sgpr=102, accum=256); n = k.name
    prologue(k, pf, 1)
    isG = f"s_cmp_ge_u32 {sI}, 28\ns_cbranch_scc0 {n}"
    isF = f"s_cmp_ge_u32 {sI}, 28\ns_cbranch_scc1 {n}"
    def srd2():
        srds(k); k("s_mov_b64 s[92:93], s[32:33]"); stamp(k, 0, ts)
    def p0(q, w): poll_setup(q, 8, 32, w, 8 + r0.bit_length() - 1); q(f"s_and_b32 s89, s2, {r0-1}\ns_lshl_b32 s89, s89, 8\nv_add_u32 v{vPO}, s89, v{vPO}")
    k(f"s_mov_b32 s94, 256\ns_mov_b32 s95, 0x20000\ns_cmp_eq_u32 {sG}, 0\ns_cbranch_scc1 {n}_c0")
    vm0 = list(k.vm)
    if prh: k(f"s_setprio {prh}")
    k(f"{isF}_fh")
    g1_addr(k); kaddr(k); srd2()
    q = Rec(k); w2_setup(q); q(f"s_mov_b32 {sKD}, {L_KD}"); kaddr2(q)
    bg = Rec(k); bg.wait("kp"); kBq = kA2(bg, ka2, 0); cv_setup(bg); cv_x(bg, 0, 4096)
    for i, f in enumerate(sum((g1_dma(k, st) for st in range(4)), [])[:d0]):
        if i == kl: kload(k, 0)
        if i == hb: k("s_barrier")
        if i == b0i: k.wait("g0"); stamp(k, 1, ts, 2); k("s_barrier"); stamp(k, 1, ts)
        f()
        if i >= 2: q.pop(2)
        if i >= kst: q.flush(); bg.pop(kpa)
    dq = g1_dma(k, 3)[d0 - 24:]
    wqH = w2_loads(k, 0, 17); wqH0 = list(wqH)
    for b in range(1, 10):
        stamp(k, b + 1, ts, 2)
        k.wait(f"g{b}")
        stamp(k, b + 1, ts, 3)
        if b == ck0: stamp(k, 2, ts)
        if b == 8: stamp(k, 4, ts)
        k("s_barrier")
        if b == ck0: stamp(k, 3, ts)
        if b <= 6: dq += g1_dma(k, b + 3)
        it = [dq.pop(0) for _ in range(min(len(dq), dw))]
        if b == ck0: assert not bg.q; it += [lambda: uload(k)]
        if b >= ck0 + wd and not dq: it += [wqH.pop(0) for _ in range(min(len(wqH) - 2, max(0, whw - len(it))))]
        if b >= 8:
            for _ in range(min(kbn, len(kBq))): bg(kBq.pop(0))
        for f in it: f(); bg.pop(kpb if b < 8 else -(-kbn // len(it)))
        if b >= 8: bg.flush()
    assert not dq
    k("s_barrier")
    for x in kBq: bg(x)
    while len(wqH) > max(cr, 2): wqH.pop(0)(); bg.pop(4)
    bg.flush(); cv_u(k); stamp(k, 1, ts, 6); k(BAR); stamp(k, 2, ts, 6)
    kC(k, slots=(32, 40, 76, 84, 92, 100)); stamp(k, 3, ts, 6)
    k(f"{n}_hc:")
    preH = len(wqH0) - len(wqH)
    while len(wqH) > cr: wqH.pop(0)()
    stamp(k, 5, ts); k(BAR); stamp(k, 6, ts)
    cv_main(k, lambda i, m: wqH.pop(0)() if wqH and (36*i + m) % 7 == 6 else None)
    while wqH: wqH.pop(0)()
    stamp(k, 7, ts); k(BAR)
    def s2pre(): k(f"s_lshl2_add_u32 s97, {sX}, {sW}"); sigoff(k, "s97", r2, S2C, None); sigregs(k, r2)
    hq = h_loads(k)
    def s2pre2():
        s2pre()
        for _ in range(hn if e == 1 else 0): hq.pop(0)()
    cv_fin(k, s2pre2); g2h_setup(k); q = Rec(k)
    def s2sig(c, l):
        k(f"s_cmp_ge_u32 {sI}, {sgf}\ns_cbranch_scc{c} {n}_{l}"); k.wait("ast"); signal(k, "s98", "~s"); k(f"{n}_{l}:")
    s2sig(1, "sa"); e == 1 or k("s_barrier"); stamp(k, 8, ts)
    if pr2: k(f"s_setprio {pr2}")
    assert not e or sh or hn <= n0 < dh
    while len(hq) > 28 - dh:
        if fx and len(hq) == 28: assert e == 1 and hn == 0; k(f"{isG}_xh\ns_barrier\n{n}_xh:")
        if not sh and len(hq) == 28 - n0: s2sig(0, "sb")
        hq.pop(0)()
    if pr2 or pr3: k(f"s_setprio {pr3}")
    T5 = (0, 1, 7, 9, 14, 16, 21, 23, 28, 29, 30)
    def hookh(i):
        if sh and i == sh: s2sig(0, "sb")
        if i in T5: stamp(k, T5.index(i) + 1, ts, 5)
        if i == 103: stamp(k, 10, ts, 5)
        if i in (1, 21 + sb3, 103): stamp(k, 9 + (1, 21 + sb3, 103).index(i), ts)
    gemm2h(k, hq, hookh, q, sb2, sb3)
    k(f"s_branch {n}_{'fin' if ts else 'end'}\n{n}_fh:")
    k.vm = list(vm0)
    side_addr(k); kaddr(k); srd2(); side_load(k); kload(k, 0); sigregs(k, r0); side_addr2(k); poll_setup(k, 1, 1); w2_setup(k); sigoff(k, sX, r0, 0, sW)
    k(f"s_mov_b32 {sKD}, 0\ns_mov_b32 {sCNT}, 1\ns_mov_b32 s81, 0")
    k.wait0(); k("s_barrier"); stamp(k, 1, ts)
    side_do(k); poll_issue(k, SDB, "0")
    k("s_barrier"); k.wait("sst"); poll_check(k, SDB, "0"); k("s_barrier"); signal(k, "s98")
    p0(k, None); kaddr2(k, 0); k(f"s_barrier\ns_branch {n}_f2\n{n}_f3:")
    k.vm = []; stamp(k, 2, ts)
    poll_issue(k, SWS, "0")
    k(f"""s_cmp_eq_u32 {sG}, 0
    s_cselect_b32 {sKD}, {KPAIR}, 0
    s_cselect_b32 s81, {81920 - L_U}, 0
    s_cselect_b32 {sCNT}, 16384, 0
    s_addc_u32 {sPAIR}, {sPAIR}, 0""")
    cv_setup(k); cv_x(k, 40960, 4096)
    for i in (1, 2, 3): k(f"v_add_u32 v{i}, s81, v{i}")
    for i in (9, 10): k(f"v_add_u32 v{i}, {sCNT}, v{i}")
    poll_check(k, SWS, "0")
    stamp(k, 3, ts); uload(k, 168)
    k(f"s_cmp_eq_u32 {sG}, 0\ns_cselect_b64 vcc, -1, 0")
    fq = wqH0[:preH]
    def honly(fs):
        l = k.label("ho"); k(f"s_cbranch_vccnz {l}")
        for f in fs: f()
        k(f"{l}:")
    cv_u(k, 168); stamp(k, 4, ts); k(BAR)
    honly([lambda: k(f"s_add_u32 {sPAIR}, {sPAIR}, 2"), lambda: uload(k, 168)])
    cv_main(k, lambda i, m: honly([fq.pop(0) for _ in range(min(fb, len(fq)))]) if fq and (36*i + m) % fst == 1 else None); assert not fq
    if f5:
        vm = list(k.vm); k(f"s_cbranch_vccz {n}_f5")
        for f in w2_loads(k, 0, 9)[:f5]: f()
        k(f"{n}_f5:"); k.vm = vm
    k(BAR); cv_fin(k)
    k(f"s_cbranch_vccnz {n}_f4")
    for i in range(4, 8): k(f"v_add_u32 v{i}, {L_KD}, v{i}")
    cv_x(k, 0, 4096); cv_u(k, 168)
    k(f"s_branch {n}_hc\n{n}_c0:")
    k.vm = list(vm0)
    if prc: k(f"s_setprio {prc}")
    def cpre():
        sigregs(k, r0); w2_setup(k); lineoff(k, "s99", sTK, r1, S1C, sCHT)
    k(f"{isF}_fc")
    r = Rec(k, 160); side_addr(r); r.flush()
    def zero(zw, sz):
        k(f"""s_xor_b32 s66, s2, {zw}
        s_or_b32 s66, s66, {sW}
        s_cmp_eq_u32 s66, 0
        s_cselect_b32 {sz}, 0, {OOB}
        v_lshlrev_b32 v{vPO}, 8, v0
        v_mov_b32 v{vPE}, 0""")
        k(f"s_cmp_lg_u32 {sz}, 0\ns_cbranch_scc1 {n}_nz")
        for l in list(range(64, 8*r0, 64)) + list(range(S1C, S1C + 32*r1, 64)) + list(range(S2C, S2C + 32*r2, 64)):
            k(f"s_mov_b32 s66, {l*256}"); k.m(f"buffer_store_dword v{vPE}, v{vPO}, {SWS}, s66 offen sc1", "~z")
        k.m(f"buffer_store_dword v{vPE}, v{vPO}, {SWS}, {sz} offen sc1", "~z")
        k(f"{n}_nz:")
    def flag(sz):
        k(f"s_cmp_lg_u32 {sz}, 0\ns_cbranch_scc1 {n}_ny\ns_waitcnt vmcnt(0)")
        k.m(f"buffer_store_dword v{vS1}, v{vSO}, {SDB}, {sz} offen sc1", "~z")
        k(f"{n}_ny:")
    srd2(); zf or zero(0, "s98")
    side_load(r); r.flush()
    if l2 and l2p == 0: l2pre(k, l2)
    cpre()
    gemm1_setup(k); gemm1_sel(k); gemm1_setup2(k); side_addr2(r); r.flush(); poll_setup(k, 1, 1)
    zf or flag("s98")
    sigoff(k, sX, r0, 0, sW)
    if l2 and l2p == 1: l2pre(k, l2)
    k.wait("side"); k("s_barrier"); stamp(k, 1, ts, 2)
    if sg0 == 0: poll_issue(k, SDB, "0")
    side_do(r); r.flush(); stamp(k, 1, ts, 3)
    if l2 and l2p == 3: l2pre(k, l2)
    r = Rec(k)
    def pre_b(st):
        stamp(k, st + 2, ts, 3)
        if st + 1 == sg0: r.flush(); k.wait("sst"); poll_check(k, SDB, "0")
        if st + 1 == ck0: r.flush(); poll_check(k, SWS, "0")
    def post_b(st):
        stamp(k, st + 2, ts, 2)
        if st in (2, 5, 6, 7): stamp(k, st + 2, ts, 4)
        if st == 0: stamp(k, 1, ts)
        if st == 4: stamp(k, 2, ts)
        if st == 8: stamp(k, 3, ts)
        if st + 2 == sg0: poll_issue(r, SDB, "0")
        if st + 1 == sg0: signal(k, "s98"); p0(r, sW)
        if st + 1 + pd == ck0: poll_issue(r, SWS, "0")
        if st + 1 == ck0: stats_load(r); poll_setup(r, 1, 28, None if e and bc > -dc else sW); sigoff(r, "s81", r1, S1C, None); sigregs(r, r1)
    gemm1c(k, pre_b, post_b, lambda g, i: r.pop())
    assert not r.q
    stamp(k, 4, ts)
    wqC = w2_loads(k, 0, 9); wqC0 = list(wqC)
    def gf(i):
        if i in (nk, nb): k("s_barrier")
        for _ in range(wg if i >= wg0 else 0): wqC.pop(0)()
    gelu(k, gf)
    assert len(wqC) >= 9
    preC = len(wqC0) - len(wqC); vm = list(k.vm)
    k(f"s_branch {n}_cc\n{n}_fc:")
    k.vm = list(vm0)
    kaddr(k); srd2(); zf and zero(224, "s98"); kload(k, 2); kload(k, 1, 80); cpre()
    k(f"s_mov_b32 {sKD}, {L_KD}\ns_mov_b32 {sCNT}, 2\ns_mov_b32 s81, {KPAIR - L_KD}")
    kaddr2(k); p0(k, None); k.wait0(); zf and flag("s98"); k(f"s_mov_b32 s98, {OOB}\ns_barrier"); stamp(k, 1, ts)
    k(f"{n}_f2:")
    stamp(k, 2, ts, 6); kA2(k, ka2); stamp(k, 3, ts, 6); k(BAR); stamp(k, 4, ts, 6); kC(k, lambda j: k("s_barrier") if j == 15 else None); stamp(k, 5, ts, 6)
    for i in range(6): k(f"v_mov_b32 v{KP+i}, v{80+i}")
    k(BAR)
    for i in range(55, 58): k(f"v_add_u32 v{i}, s81, v{i}")
    k(f"s_sub_u32 {sCNT}, {sCNT}, 1\ns_cmp_lg_u32 {sCNT}, 0\ns_cbranch_scc1 {n}_f2\ns_branch {n}_f3\n{n}_f4:")
    assert f5 + f6 <= preC
    for f in wqC0[f5:f5 + f6]: f()
    k("s_barrier"); poll_setup(k, 1, 28, None if e and bc > -dc else sW)
    if fw: k("s_waitcnt vmcnt(0)")
    for f in wqC0[f5 + f6:preC]: f()
    k.vm = vm
    k(f"{n}_cc:")
    stamp(k, 5, ts)
    for _ in range(m1): wqC.pop(0)()
    if nb == 9: k(f"{isF}_nb\ns_barrier\n{n}_nb:")
    if fw: k(f"{isF}_fw")
    k.wait("hst"); signal(k, "s98")
    if fw: k(f"{n}_fw:")
    stamp(k, 6, ts)
    q = Rec(k); g2c_setup(q); nw0 = len(wqC)
    while wqC:
        if nb == 8 and len(wqC) == nw0 - nbw: k(f"{isF}_nb\ns_barrier\n{n}_nb:")
        if len(wqC) == pe: poll_issue(k, SWS, "s99")
        if len(wqC) == fx: k(f"{isG}_xc\ns_barrier\n{n}_xc:")
        wqC.pop(0)(); q.pop(2)
    q.flush(); assert bx == 0
    pe or poll_issue(k, SWS, "s99"); g2c_setup2(k)
    e == 1 or k("s_barrier")
    poll_check(k, SWS, "s99")
    if prc: k("s_setprio 0")
    stamp(k, 7, ts)
    if not e: k("s_barrier"); stamp(k, 8, ts)
    hq = h_loads(k)
    for i in range(dc):
        if e and i == dc + bc: k("s_barrier"); stamp(k, 8, ts)
        hq.pop(0)()
    poll_setup(k, 2, 32, sW, 8 + r2.bit_length())
    k(f"s_lshr_b32 s97, {sTK}, 4\ns_lshl2_add_u32 s97, {sCHT}, s97"); lineoff(k, "s99", "s97", r2, S2C, sTK)
    def hookc(i):
        if e and i == bc: k("s_barrier"); stamp(k, 8, ts)
        if i in T5: stamp(k, T5.index(i) + 1, ts, 5)
        if i == 1: stamp(k, 9, ts)
        if i == pi2: poll_issue(k, SWS, "s99")
        if i == (0, c2, 23, 28)[ckb]: stamp(k, 10, ts); poll_check(k, SWS, "s99"); stamp(k, 11, ts)
    assert ckb != 1 or pi2 < c2 <= max(18, 28 - dc)
    gemm2c(k, hq, hookc, ckb, late)
    k(f"{n}_fin:")
    if ts:
        stamp(k, 12, ts); k.wait0(); stamp(k, 13, ts)
        k(f"""s_lshl3_add_u32 s66, s2, {sW8}
        s_lshl_b32 s66, s66, 7
        s_add_u32 s66, s66, 0x40000
        v_lshlrev_b32 v1, 2, v0
        s_mov_b32 exec_hi, 0
        buffer_store_dword v{vTS}, v1, {SWS}, s66 offen""")
        if X.get("dbg"):
            g = X["dbg"] - 1
            k(f"""s_mov_b32 exec_lo, 1
            v_not_b32 v2, v{vTS}
            buffer_atomic_umax v2, v1, {SDB}, 0 offen offset:4 sc1
            s_cmp_ge_u32 {sI}, 28
            s_cselect_b32 s66, 2, 0
            s_add_u32 s66, s66, {sG}
            s_cmp_eq_u32 s66, {g & 3}
            s_cselect_b32 s66, 0, {OOB}
            s_mov_b32 exec_lo, 0x3fff
            buffer_atomic_{'umax' if g & 4 else 'add'} v{vTS}, v1, {SDB}, s66 offen offset:8 sc1""")
    fin(k)
    return build(HDR + ["; @launch grid=(256,1,1) block=(512,1,1) lds=163840"], [k])
```
